```python
import torch

def _softmax(x, axis=-1):
    return torch.softmax(x, dim=axis)
def _gelu(x):
    return torch.nn.functional.gelu(x, approximate="tanh")
def _silu(x):
    return torch.nn.functional.silu(x)
def _sigmoid(x):
    return torch.sigmoid(x)
def _layernorm(x, axis=-1, eps=1e-5):
    m = x.mean(dim=axis, keepdim=True)
    v = x.var(dim=axis, keepdim=True, unbiased=False)
    return (x - m) / torch.sqrt(v + eps)
def _scatter_add(tgt, idx, src, axis=0):
    return tgt.clone().index_add_(axis, idx, src)
def _segment_sum(src, seg, n):
    out = torch.zeros((n,) + src.shape[1:], dtype=src.dtype)
    return out.index_add_(0, seg, src)
def _pad(x, pw):
    flat = tuple(v for pair in reversed(pw) for v in pair)
    return torch.nn.functional.pad(x, flat)

kernel_name = 'concat_heads__mha_block_cached__mha_block_cached__near_ridge'

def setup_inputs():

    _w = (lambda a: (lambda t: t.to(torch.bfloat16) if t.is_floating_point() else t)(torch.as_tensor(a)))
    def _A_setup():
        B, Sq, D = 8, 96, 640
        H, Sk, Dh = 32, 512, 128
        return {
            "x": _w((lambda *s: torch.randn(*s, dtype=torch.bfloat16) * 0.8)(B, Sq, D)),
            "k_cache": _w((lambda *s: torch.randn(*s, dtype=torch.bfloat16) * 0.8)(B, H, Sk, Dh)),
            "v_cache": _w((lambda *s: torch.randn(*s, dtype=torch.bfloat16) * 0.05)(B, H, Sk, Dh)),
            "wq": _w((lambda *s: torch.randn(*s, dtype=torch.bfloat16) * 0.8)(D, H * Dh) * (D ** -0.5)),
            "wo": _w((lambda *s: torch.randn(*s, dtype=torch.bfloat16) * 0.05)(H * Dh, D) * ((H * Dh) ** -0.5)),
        }
    _A_in = _A_setup()

    def _B_setup():
        B, Sq, D = 8, 96, 640
        H, Sk, Dh = 32, 512, 128
        return {
            "x": _w((lambda *s: torch.randn(*s, dtype=torch.bfloat16) * 0.8)(B, Sq, D)),
            "k_cache": _w((lambda *s: torch.randn(*s, dtype=torch.bfloat16) * 0.8)(B, H, Sk, Dh)),
            "v_cache": _w((lambda *s: torch.randn(*s, dtype=torch.bfloat16) * 0.05)(B, H, Sk, Dh)),
            "wq": _w((lambda *s: torch.randn(*s, dtype=torch.bfloat16) * 0.8)(D, H * Dh) * (D ** -0.5)),
            "wo": _w((lambda *s: torch.randn(*s, dtype=torch.bfloat16) * 0.05)(H * Dh, D) * ((H * Dh) ** -0.5)),
        }
    _B_in = _B_setup()

    return {
        "A_x": _A_in["x"],
        "A_k_cache": _A_in["k_cache"],
        "A_v_cache": _A_in["v_cache"],
        "A_wq": _A_in["wq"],
        "A_wo": _A_in["wo"],
        "B_x": _B_in["x"],
        "B_k_cache": _B_in["k_cache"],
        "B_v_cache": _B_in["v_cache"],
        "B_wq": _B_in["wq"],
        "B_wo": _B_in["wo"],
    }

def reference(A_x, A_k_cache, A_v_cache, A_wq, A_wo, B_x, B_k_cache, B_v_cache, B_wq, B_wo):
    def _A_ref(x, k_cache, v_cache, wq, wo):
        B, Sq, D = x.shape
        H, Dh = 32, 128
        q = (lambda x, *d: x.permute(*d))((x @ wq).reshape(B, Sq, H, Dh), 0, 2, 1, 3)
        scores = torch.einsum("bhqd,bhkd->bhqk", q, k_cache) * (Dh ** -0.5)
        p = _softmax(scores, axis=-1)
        o = torch.einsum("bhqk,bhkd->bhqd", p, v_cache)
        return (lambda x, *d: x.permute(*d))(o, 0, 2, 1, 3).reshape(B, Sq, H * Dh) @ wo

    def _B_ref(x, k_cache, v_cache, wq, wo):
        B, Sq, D = x.shape
        H, Dh = 32, 128
        q = (lambda x, *d: x.permute(*d))((x @ wq).reshape(B, Sq, H, Dh), 0, 2, 1, 3)
        scores = torch.einsum("bhqd,bhkd->bhqk", q, k_cache) * (Dh ** -0.5)
        p = _softmax(scores, axis=-1)
        o = torch.einsum("bhqk,bhkd->bhqd", p, v_cache)
        return (lambda x, *d: x.permute(*d))(o, 0, 2, 1, 3).reshape(B, Sq, H * Dh) @ wo

    a = _A_ref(A_x, A_k_cache, A_v_cache, A_wq, A_wo)
    b = _B_ref(B_x, B_k_cache, B_v_cache, B_wq, B_wo)
    return torch.concatenate([a, b], axis=-1)
```

```python
KN = "concat_heads__mha_block_cached__mha_block_cached__near_ridge_kernel"

def header(launch_lines):
    s = ""
    for l in launch_lines:
        s += l + "\n"
    s += '.amdgcn_target "amdgcn-amd-amdhsa--gfx950"\n.text\n'
    return s

def kernel_begin(name):
    return f".globl {name}\n.p2align 8\n.type {name},@function\n{name}:\n"

def kernel_desc(name, vgpr=512, sgpr=102, accum=256, ydim=False):
    s = '.section .rodata,"a"\n.p2align 6\n'
    s += f".amdhsa_kernel {name}\n"
    s += f"  .amdhsa_next_free_vgpr {vgpr}\n  .amdhsa_next_free_sgpr {sgpr}\n  .amdhsa_accum_offset {accum}\n"
    s += "  .amdhsa_group_segment_fixed_size 0\n  .amdhsa_kernarg_size 104\n  .amdhsa_user_sgpr_count 2\n"
    s += "  .amdhsa_user_sgpr_kernarg_segment_ptr 1\n  .amdhsa_system_sgpr_workgroup_id_x 1\n"
    if ydim:
        s += "  .amdhsa_system_sgpr_workgroup_id_y 1\n"
    s += ".end_amdhsa_kernel\n"
    return s
```

```python
import sys
from gen_common import *

class G:
    def __init__(self):
        self.L = []; self.vm = []
    def e(self, s): self.L.append(s)
    def c(self, s): self.L.append("; " + s)
    def vmem(self, s, tag): self.L.append(s); self.vm.append(tag)
    def wait_vm(self, tag):
        idx = max([i for i, t in enumerate(self.vm) if t == tag], default=None)
        if idx is None: return
        n = len(self.vm) - 1 - idx
        assert n <= 63, n
        self.e(f"s_waitcnt vmcnt({n})")
        self.vm = self.vm[idx + 1:]
    def wait_vm_all(self):
        self.e("s_waitcnt vmcnt(0)"); self.vm = []
    def text(self): return "\n".join(self.L) + "\n"

NT = " nt"

def vr(b, n=4): return f"v[{b}:{b+n-1}]"
def ar(b, n=4): return f"a[{b}:{b+n-1}]"

SLOT = 16384
NSLOT = 7
E = NSLOT * SLOT
QB = [72 * 1024, 32 * 1024, 112 * 1024]

def gen_k1(name):
    g = G(); e = g.e
    e("s_cmp_ge_u32 s2, 256")
    e("s_cbranch_scc1 L_k1_end")
    e("s_and_b32 s14, s2, 7")
    e("s_lshr_b32 s15, s2, 3")
    e("s_lshr_b32 s46, s14, 2")
    e("s_mul_i32 s3, s46, 40")
    e("s_load_dwordx8 s[4:11], s[0:1], s3")
    e("s_load_dwordx2 s[12:13], s[0:1], 96")
    e("s_and_b32 s47, s14, 3")
    e("s_lshl_b32 s47, s47, 3")
    e("s_and_b32 s48, s15, 7")
    e("s_add_u32 s47, s47, s48")
    e("s_lshr_b32 s48, s15, 3")
    e("v_and_b32 v1, 63, v0")
    e("v_lshrrev_b32 v2, 6, v0")
    e("v_and_b32 v3, 15, v1")
    e("v_readfirstlane_b32 s36, v2")
    e("v_and_b32 v2, 15, v1")
    e("v_lshrrev_b32 v3, 4, v1")
    e("s_nop 3")
    e("s_and_b32 s37, s36, 1")
    e("s_lshr_b32 s38, s36, 1")
    e("s_lshl_b32 s39, s36, 12")
    e("s_mul_i32 s42, s36, 6144")
    e("s_mov_b32 s40, 0x3e0293ee")
    e("s_mov_b32 s41, 0x3e0293ee")
    e("v_lshrrev_b32 v40, 3, v1")
    e("s_mul_i32 s43, s36, 48")
    e("v_add_u32 v40, s43, v40")
    e("v_mul_u32_u24 v40, 1280, v40")
    e("v_and_b32 v41, 7, v1")
    e("v_xor_b32 v42, v41, v3")
    e("v_xor_b32 v43, 4, v42")
    e("v_lshlrev_b32 v42, 4, v42")
    e("v_lshlrev_b32 v43, 4, v43")
    for i in range(6):
        src = 42 if i % 2 == 0 else 43
        e(f"v_add_u32 v{164+i}, v40, v{src}")
        k = 8 * i * 1280 - (i & 3) * 1024
        if k: e(f"v_add_u32 v{164+i}, {k}, v{164+i}")
    e("s_lshl_b32 s43, s36, 4")
    e("v_add_u32 v40, s43, v3")
    e("v_lshlrev_b32 v40, 13, v40")
    e("v_lshlrev_b32 v41, 1, v3")
    e("v_xor_b32 v42, v2, v41")
    e("v_xor_b32 v43, 8, v42")
    e("v_lshlrev_b32 v42, 4, v42")
    e("v_lshlrev_b32 v43, 4, v43")
    for i in range(4):
        src = 42 if ((i >> 1) & 1) == 0 else 43
        e(f"v_add_u32 v{160+i}, v40, v{src}")
        k = 4 * i * 8192 - 1024 * i
        if k: e(f"v_add_u32 v{160+i}, {k}, v{160+i}")
    e("v_lshlrev_b32 v40, 8, v3")
    e("v_add_u32 v40, s39, v40")
    for i in range(4):
        e(f"v_add_u32 v41, {4*i}, v3")
        e("v_xor_b32 v41, v2, v41")
        e("v_lshlrev_b32 v41, 4, v41")
        e(f"v_add_u32 v{4+i}, v40, v41")
    for p in range(2):
        e(f"v_add_u32 v41, {4*p}, v3")
        e("v_lshlrev_b32 v41, 1, v41")
        e("v_xor_b32 v41, v2, v41")
        e("v_lshlrev_b32 v41, 4, v41")
        e(f"v_add_u32 v{8+p}, v40, v41")
    e("s_waitcnt lgkmcnt(0)")
    e("s_mul_i32 s43, s48, 245760")
    e("s_add_u32 s16, s4, s43"); e("s_addc_u32 s17, s5, 0"); e("s_and_b32 s17, s17, 0xffff")
    e("s_mov_b32 s18, 245760"); e("s_mov_b32 s19, 0x20000")
    e("s_lshl_b32 s43, s47, 8")
    e("s_add_u32 s28, s10, s43"); e("s_addc_u32 s29, s11, 0"); e("s_and_b32 s29, s29, 0xffff")
    e("s_sub_u32 s30, 5242880, s43"); e("s_mov_b32 s31, 0x20000")
    e("s_lshl_b32 s43, s48, 6"); e("s_add_u32 s43, s43, s47"); e("s_lshl_b32 s43, s43, 17")
    e("s_add_u32 s20, s6, s43"); e("s_addc_u32 s21, s7, 0"); e("s_and_b32 s21, s21, 0xffff")
    e("s_sub_u32 s22, 33554432, s43"); e("s_mov_b32 s23, 0x20000")
    e("s_add_u32 s24, s8, s43"); e("s_addc_u32 s25, s9, 0"); e("s_and_b32 s25, s25, 0xffff")
    e("s_sub_u32 s26, 33554432, s43"); e("s_mov_b32 s27, 0x20000")
    e("s_mul_i32 s43, s46, 6291456")
    e("s_add_u32 s32, s12, s43"); e("s_addc_u32 s33, s13, 0"); e("s_and_b32 s33, s33, 0xffff")
    e("s_mov_b32 s34, 6291456"); e("s_mov_b32 s35, 0x20000")

    def dma_q(i):
        buf = QB[i % 3]
        tag = f"Q{i}"
        e(f"s_mov_b32 s43, {i*128}")
        e(f"s_add_u32 m0, s42, {buf}")
        e("s_nop 0")
        for ii in range(4):
            g.vmem(f"buffer_load_dwordx4 v{164+ii}, s[16:19], s43 offen offset:{ii*1024}{NT} lds", tag)
        e(f"s_add_u32 m0, s42, {buf+4096}")
        e("s_nop 0")
        for ii in range(4, 6):
            g.vmem(f"buffer_load_dwordx4 v{164+ii}, s[16:19], s43 offen offset:{(ii&3)*1024}{NT} lds", tag)
        e(f"s_mov_b32 s43, {i*524288}")
        e(f"s_add_u32 m0, s39, {buf+24576}")
        e("s_nop 0")
        for ii in range(4):
            g.vmem(f"buffer_load_dwordx4 v{160+ii}, s[28:31], s43 offen offset:{ii*1024}{NT} lds", tag)

    def dma_kv(n):
        if n >= 32: return
        r, jj = n // 16, n % 16
        isK = jj < 8
        j = jj % 8
        slot = (n % NSLOT) * SLOT
        e(f"s_mov_b32 s43, {r*4194304 + j*16384}")
        e(f"s_add_u32 m0, s39, {slot}")
        e("s_nop 0")
        for ii in range(4):
            if isK:
                g.vmem(f"buffer_load_dwordx4 v{4+ii}, s[20:23], s43 offen offset:{ii*1024}{NT} lds", f"S{n}")
            else:
                g.vmem(f"buffer_load_dwordx4 v{8+(ii&1)}, s[24:27], s43 offen offset:{ii*1024}{NT} lds", f"S{n}")

    dma_q(0); dma_q(1); dma_q(2)
    dma_kv(0); dma_kv(1)

    e("s_lshl_b32 s44, s38, 5")
    e("v_add_u32 v40, s44, v2")
    e("v_lshlrev_b32 v40, 8, v40")
    e("v_xor_b32 v41, v3, v2")
    e("v_lshlrev_b32 v41, 4, v41")
    e("v_add_u32 v10, v40, v41")
    e("v_lshrrev_b32 v42, 2, v2")
    e("v_and_b32 v43, 3, v2")
    e("v_lshlrev_b32 v44, 2, v3")
    e("v_add_u32 v44, v44, v42")
    e("v_add_u32 v40, s44, v44")
    e("v_lshlrev_b32 v40, 8, v40")
    e("v_and_b32 v45, 7, v44")
    e("s_lshl_b32 s45, s38, 2")
    e("v_xor_b32 v45, s45, v45")
    e("v_lshlrev_b32 v45, 5, v45")
    e("v_lshlrev_b32 v46, 3, v43")
    e("v_add3_u32 v11, v40, v45, v46")
    e("v_lshlrev_b32 v12, 4, v1")
    e("s_mul_i32 s44, s37, 6144")
    e("v_lshrrev_b32 v40, 3, v2"); e("v_lshlrev_b32 v40, 10, v40")
    e("v_and_b32 v41, 7, v2"); e("v_lshlrev_b32 v41, 7, v41")
    e("v_lshrrev_b32 v47, 1, v2"); e("v_and_b32 v47, 7, v47"); e("v_xor_b32 v47, v3, v47"); e("v_lshlrev_b32 v47, 4, v47")
    e("v_add3_u32 v170, v40, v41, v47")
    e("v_add_u32 v170, s44, v170")
    e("v_lshlrev_b32 v40, 3, v3"); e("v_add_u32 v40, v40, v42"); e("v_lshlrev_b32 v40, 8, v40")
    e("v_and_b32 v41, 1, v3"); e("v_lshlrev_b32 v41, 2, v41"); e("v_add_u32 v41, v41, v42")
    e("v_xor_b32 v41, s45, v41"); e("v_lshlrev_b32 v41, 5, v41")
    e("v_add3_u32 v171, v40, v41, v46")
    e("v_add_u32 v171, 24576, v171")
    e("v_mov_b32 v40, 0x3f803f80")
    for i in range(4): e(f"v_accvgpr_write_b32 a{176+i}, v40")

    QSET = [96, 136]
    def q_reads(i, ks, st):
        buf = QB[i % 3]
        base = QSET[st]
        e(f"v_add_u32 v13, {buf}, v170")
        if ks: e("v_xor_b32 v13, 64, v13")
        e(f"v_add_u32 v14, {buf + ks*8192}, v171")
        for t in range(1, 4): e(f"v_xor_b32 v{14+t}, {t<<5}, v14")
        for t in range(4):
            e(f"ds_read_b64_tr_b16 {ar(base+t*4,2)}, v{14+t}")
            e(f"ds_read_b64_tr_b16 {ar(base+t*4+2,2)}, v{14+t} offset:1024")
        for uu in range(6):
            imm = (uu // 3) * 12288 + (uu % 3) * 2048
            e(f"ds_read_b128 {ar(base+16+uu*4)}, v13 offset:{imm}")
    def q_mfma(st, first):
        base = QSET[st]
        for t in range(4):
            for uu in range(6):
                d = 64 + (t * 6 + uu) * 4
                cc = "0" if first else vr(d)
                e(f"v_mfma_f32_16x16x32_bf16 {vr(d)}, {ar(base+t*4)}, {ar(base+16+uu*4)}, {cc}")
    g.wait_vm("Q0")
    e("s_barrier")
    q_reads(0, 0, 0)
    e("s_waitcnt lgkmcnt(0)")
    for i in range(10):
        q_reads(i, 1, 1)
        q_mfma(0, i == 0)
        e("s_waitcnt lgkmcnt(0)")
        if i < 9:
            g.wait_vm(f"Q{i+1}")
            e("s_barrier")
            if i + 3 < 10: dma_q(i + 3)
            if i == 7: dma_kv(2); dma_kv(3)
            q_reads(i + 1, 0, 0)
        q_mfma(1, False)
        if i < 9: e("s_waitcnt lgkmcnt(0)")
    e("s_barrier")
    dma_kv(4); dma_kv(5)
    e("s_mul_i32 s44, s37, 48")
    e("v_add_u32 v40, s44, v2"); e("v_lshlrev_b32 v40, 8, v40")
    e("s_lshl_b32 s44, s38, 3")
    e("v_lshrrev_b32 v41, 1, v3"); e("v_add_u32 v41, s44, v41"); e("v_xor_b32 v41, v41, v2"); e("v_lshlrev_b32 v41, 4, v41")
    e("v_and_b32 v42, 1, v3"); e("v_lshlrev_b32 v42, 3, v42")
    e("v_add3_u32 v40, v40, v41, v42")
    e(f"v_add_u32 v40, {E}, v40")
    for t in range(1, 4): e(f"v_xor_b32 v{40+t}, {t<<5}, v40")
    e("s_nop 7")
    for t in range(4):
        for uu in range(6):
            d = 64 + (t * 6 + uu) * 4
            e(f"v_cvt_pk_bf16_f32 v44, v{d}, v{d+1}")
            e(f"v_cvt_pk_bf16_f32 v45, v{d+2}, v{d+3}")
            imm = (uu // 3) * 24576 + (uu % 3) * 4096
            e(f"ds_write_b64 v{40+t}, v[44:45] offset:{imm}")
            e("s_nop 0")
    e("s_waitcnt lgkmcnt(0)")
    e("s_barrier")
    e("s_mul_i32 s44, s37, 48")
    e("v_add_u32 v40, s44, v2"); e("v_lshlrev_b32 v40, 8, v40")
    e("v_xor_b32 v41, v3, v2"); e("v_lshlrev_b32 v41, 4, v41")
    e("v_add_u32 v40, v40, v41")
    e(f"v_add_u32 v40, {E}, v40")
    for s in range(1, 4): e(f"v_xor_b32 v{40+s}, {s<<6}, v40")
    cnt = 0
    for r in range(2):
        for u in range(3):
            for s in range(4):
                e(f"ds_read_b128 {ar(((r*3+u)*4+s)*4)}, v{40+s} offset:{r*24576+u*4096}")
                cnt += 1
                if cnt % 12 == 0: e("s_waitcnt lgkmcnt(0)")

    KSET = [96, 112]
    def k_reads(n, tau, st):
        slot = (n % NSLOT) * SLOT
        e(f"v_add_u32 v13, {slot + tau*4096}, v10")
        for s in range(1, 4): e(f"v_xor_b32 v{13+s}, {s<<6}, v13")
        for s in range(4):
            e(f"ds_read_b128 {ar(KSET[st]+s*4)}, v{13+s}")
    def s_mfma(r, j, tau, st):
        for s in range(4):
            for u in range(3):
                d = 64 + (j * 3 + u) * 8 + 4 * tau
                cc = "0" if s == 0 else vr(d)
                e(f"v_mfma_f32_16x16x32_bf16 {vr(d)}, {ar(KSET[st]+s*4)}, {ar(((r*3+u)*4+s)*4)}, {cc}")
    def v_reads(n, hh, st):
        slot = (n % NSLOT) * SLOT
        e(f"v_add_u32 v13, {slot}, v11")
        if hh: e(f"v_xor_b32 v13, {4<<5}, v13")
        for t in range(1, 4): e(f"v_xor_b32 v{13+t}, {t<<5}, v13")
        for t in range(4):
            e(f"ds_read_b64_tr_b16 {ar(KSET[st]+t*4,2)}, v{13+t}")
            e(f"ds_read_b64_tr_b16 {ar(KSET[st]+t*4+2,2)}, v{13+t} offset:4096")
    def pv_mfma(j, hh, st):
        for t in range(4):
            lam = 4 * hh + t
            for u in range(3):
                d = 64 + (lam * 3 + u) * 8 + 4
                p = 64 + (j * 3 + u) * 8
                cc = "0" if j == 0 else vr(d)
                e(f"v_mfma_f32_16x16x32_bf16 {vr(d)}, {ar(KSET[st]+t*4)}, {vr(p)}, {cc}")

    for r in range(2):
        n0 = 16 * r
        g.c(f"==== round {r} S phase")
        g.wait_vm(f"S{n0}")
        e("s_barrier")
        if r == 0:
            dma_kv(6)
        else:
            dma_kv(n0 + 6)
        k_reads(n0, 0, 0)
        e("s_waitcnt lgkmcnt(0)")
        for j in range(8):
            n = n0 + j
            k_reads(n, 1, 1)
            s_mfma(r, j, 0, 0)
            e("s_waitcnt lgkmcnt(0)")
            if j < 7:
                g.wait_vm(f"S{n+1}")
                e("s_barrier")
                dma_kv(n + 7)
                k_reads(n + 1, 0, 0)
                s_mfma(r, j, 1, 1)
                e("s_waitcnt lgkmcnt(0)")
            else:
                e("s_barrier")
                dma_kv(n + 7)
                s_mfma(r, j, 1, 1)
        g.c("---- softmax: max")
        e("s_nop 7"); e("s_nop 1")
        for u in range(3):
            R = 64 + u * 8
            e(f"v_max3_f32 v{21+u}, v{R}, v{R+1}, v{R+2}")
        vals = {u: [64 + (j * 3 + u) * 8 + x for j in range(8) for x in range(8)][3:] for u in range(3)}
        k = 0
        while k < len(vals[0]):
            for u in range(3):
                a = vals[u][k]
                b = vals[u][k + 1] if k + 1 < len(vals[u]) else a
                e(f"v_max3_f32 v{21+u}, v{21+u}, v{a}, v{b}")
            k += 2
        for u in range(3): e(f"v_mov_b32 v{40+u}, v{21+u}")
        e("s_nop 1")
        for u in range(3): e(f"v_permlane32_swap_b32 v{21+u}, v{40+u}")
        e("s_nop 1")
        for u in range(3): e(f"v_max_f32 v{21+u}, v{21+u}, v{40+u}")
        for u in range(3): e(f"v_mov_b32 v{40+u}, v{21+u}")
        e("s_nop 1")
        for u in range(3): e(f"v_permlane16_swap_b32 v{21+u}, v{40+u}")
        e("s_nop 1")
        for u in range(3): e(f"v_max_f32 v{21+u}, v{21+u}, v{40+u}")
        e("s_mul_i32 s44, s36, 768")
        e("v_lshlrev_b32 v43, 2, v1")
        e(f"v_add_u32 v43, {E}, v43")
        e("v_add_u32 v44, s44, v43")
        for u in range(3): e(f"ds_write_b32 v44, v{21+u} offset:{u*256}")
        e("s_xor_b32 s44, s36, 2"); e("s_mul_i32 s44, s44, 768")
        e("v_add_u32 v45, s44, v43")
        e("s_waitcnt lgkmcnt(0)")
        e("s_barrier")
        for u in range(3): e(f"ds_read_b32 v{40+u}, v45 offset:{u*256}")
        e("s_waitcnt lgkmcnt(0)")
        for u in range(3): e(f"v_max_f32 v{21+u}, v{21+u}, v{40+u}")
        for u in range(3): e(f"v_mul_f32 v{46+2*u}, s40, v{21+u}")
        g.c("---- softmax: exp")
        pend = None
        first_l = [True] * 3
        def lmfma(p, u):
            cc = "0" if first_l[u] else vr(28 + 4 * u)
            first_l[u] = False
            e(f"v_mfma_f32_16x16x32_bf16 {vr(28+4*u)}, {ar(176)}, {vr(p)}, {cc}")
        for j in range(8):
            for u in range(3):
                R = 64 + (j * 3 + u) * 8
                for x in range(0, 8, 2):
                    e(f"v_pk_fma_f32 v[{R+x}:{R+x+1}], v[{R+x}:{R+x+1}], s[40:41], v[{46+2*u}:{47+2*u}] op_sel_hi:[1,0,0] neg_lo:[0,0,1] neg_hi:[0,0,1]")
                if pend is not None:
                    lmfma(*pend)
                for x in range(8): e(f"v_exp_f32 v{R+x}, v{R+x}")
                for x in range(4): e(f"v_cvt_pk_bf16_f32 v{R+x}, v{R+2*x}, v{R+2*x+1}")
                pend = (R, u)
        e("s_nop 1")
        lmfma(*pend)
        e("s_mul_i32 s44, s36, 768")
        e("v_lshlrev_b32 v43, 2, v1")
        e(f"v_add_u32 v43, {E+4096}, v43")
        e("v_add_u32 v44, s44, v43")
        e("s_xor_b32 s44, s36, 2"); e("s_mul_i32 s44, s44, 768")
        e("v_add_u32 v45, s44, v43")
        e("s_nop 7")
        for u in range(3): e(f"ds_write_b32 v44, v{28+4*u} offset:{u*256}")
        e("s_waitcnt lgkmcnt(0)")
        g.c(f"==== round {r} PV phase")
        n8 = n0 + 8
        g.wait_vm(f"S{n8}")
        e("s_barrier")
        for u in range(3): e(f"ds_read_b32 v{40+u}, v45 offset:{u*256}")
        v_reads(n8, 0, 0)
        e("s_waitcnt lgkmcnt(0)")
        for u in range(3):
            e(f"v_add_f32 v{40+u}, v{40+u}, v{28+4*u}")
        for u in range(3):
            e(f"v_rcp_f32 v{24+u}, v{40+u}")
        for j in range(8):
            n = n8 + j
            v_reads(n, 1, 1)
            pv_mfma(j, 0, 0)
            e("s_waitcnt lgkmcnt(0)")
            if j < 7:
                g.wait_vm(f"S{n+1}")
                e("s_barrier")
                dma_kv(n + 7)
                v_reads(n + 1, 0, 0)
                pv_mfma(j, 1, 1)
                e("s_waitcnt lgkmcnt(0)")
            else:
                pv_mfma(j, 1, 1)
        g.c("---- O exchange")
        e("s_mul_i32 s44, s36, 12288")
        e(f"v_add_u32 v43, {E}, v12")
        e("v_add_u32 v44, s44, v43")
        e("s_xor_b32 s44, s36, 2"); e("s_mul_i32 s44, s44, 12288")
        e("v_add_u32 v45, s44, v43")
        e("s_nop 7")
        for lam in range(4, 8):
            for u in range(3):
                d = 64 + (lam * 3 + u) * 8 + 4
                e(f"ds_write_b128 v44, {vr(d)} offset:{((lam-4)*3+u)*1024}")
        e("s_waitcnt lgkmcnt(0)")
        e("s_barrier")
        for lam in range(4):
            for u in range(3):
                d = 64 + (lam * 3 + u) * 8
                e(f"ds_read_b128 {vr(d)}, v45 offset:{(lam*3+u)*1024}")
        e("s_waitcnt lgkmcnt(0)")
        for lam in range(4):
            for u in range(3):
                d = 64 + (lam * 3 + u) * 8
                for x in range(0, 4, 2):
                    e(f"v_pk_add_f32 v[{d+x}:{d+x+1}], v[{d+x}:{d+x+1}], v[{d+4+x}:{d+4+x+1}]")
        for lam in range(4):
            for u in range(3):
                d = 64 + (lam * 3 + u) * 8
                for x in range(4):
                    e(f"v_mul_f32 v{d+x}, v{d+x}, v{24+u}")
        e("s_lshl_b32 s44, s48, 1"); e(f"s_add_u32 s44, s44, {r}"); e("s_mul_i32 s44, s44, 6")
        e("s_mul_i32 s45, s37, 3"); e("s_add_u32 s44, s44, s45")
        e("s_lshl_b32 s44, s44, 7")
        e("s_lshl_b32 s45, s47, 2"); e("s_add_u32 s44, s44, s45")
        e("s_lshl_b32 s45, s38, 1"); e("s_add_u32 s44, s44, s45")
        e("s_lshl_b32 s44, s44, 10")
        k = 0
        for u in range(3):
            for sg in range(2):
                t0 = 64 + ((2 * sg) * 3 + u) * 8
                t1 = 64 + ((2 * sg + 1) * 3 + u) * 8
                b = 52 + 4 * (k % 3)
                e(f"v_cvt_pk_bf16_f32 v{b}, v{t0}, v{t0+1}")
                e(f"v_cvt_pk_bf16_f32 v{b+1}, v{t0+2}, v{t0+3}")
                e(f"v_cvt_pk_bf16_f32 v{b+2}, v{t1}, v{t1+1}")
                e(f"v_cvt_pk_bf16_f32 v{b+3}, v{t1+2}, v{t1+3}")
                e(f"s_add_u32 s49, s44, {u*131072 + sg*1024}")
                g.vmem(f"buffer_store_dwordx4 {vr(b)}, v12, s[32:35], s49 offen", f"O{r}")
                e("s_nop 1")
                k += 1
    g.wait_vm_all()
    e("L_k1_end:")
    e("s_endpgm")
    return ".text\n" + kernel_begin(name) + g.text()

def gen_k2(name):
    g = G(); e = g.e
    PD = 4
    e("s_cmp_ge_u32 s2, 240")
    e("s_cbranch_scc1 L_k2_end")
    e("s_and_b32 s14, s2, 7")
    e("s_lshr_b32 s15, s2, 3")
    e("s_lshr_b32 s46, s14, 2")
    e("s_mul_i32 s3, s46, 40")
    e("s_add_u32 s3, s3, 32")
    e("s_load_dwordx2 s[4:5], s[0:1], s3")
    e("s_load_dwordx2 s[6:7], s[0:1], 80")
    e("s_load_dwordx2 s[12:13], s[0:1], 96")
    e("s_mul_i32 s47, s15, 52"); e("s_lshr_b32 s47, s47, 8")
    e("s_mul_i32 s48, s47, 5"); e("s_sub_u32 s48, s15, s48")
    e("s_and_b32 s49, s14, 1"); e("s_mul_i32 s49, s49, 6"); e("s_add_u32 s47, s47, s49")
    e("s_lshr_b32 s49, s14, 1"); e("s_and_b32 s49, s49, 1"); e("s_mul_i32 s49, s49, 5"); e("s_add_u32 s48, s48, s49")
    e("v_and_b32 v1, 63, v0")
    e("v_lshrrev_b32 v2, 6, v0")
    e("s_nop 0")
    e("v_readfirstlane_b32 s36, v2")
    e("v_and_b32 v2, 15, v1")
    e("v_lshrrev_b32 v3, 4, v1")
    e("s_nop 3")
    e("s_lshl_b32 s43, s36, 15")
    e("v_lshlrev_b32 v4, 4, v1")
    e("v_add_u32 v4, s43, v4")
    for mi in range(1, 4): e(f"v_add_u32 v{4+mi}, {mi*131072}, v4")
    e("s_lshl_b32 s43, s36, 10")
    e("v_lshrrev_b32 v40, 3, v1"); e("v_add_u32 v40, s43, v40"); e("v_mul_u32_u24 v40, 1280, v40")
    e("v_and_b32 v41, 7, v1"); e("v_lshlrev_b32 v42, 1, v3"); e("v_xor_b32 v41, v41, v42"); e("v_lshlrev_b32 v41, 4, v41")
    e("v_add_u32 v8, v40, v41")
    for i in range(1, 4): e(f"v_add_u32 v{8+i}, {8*i*1280 - 1024*i}, v8")
    e("v_lshrrev_b32 v42, 2, v2"); e("v_and_b32 v43, 3, v2")
    e("v_lshlrev_b32 v44, 2, v3"); e("v_add_u32 v44, v44, v42"); e("v_lshlrev_b32 v40, 7, v44")
    e("v_lshrrev_b32 v45, 1, v44"); e("v_and_b32 v45, 3, v45"); e("v_lshlrev_b32 v45, 5, v45")
    e("v_lshlrev_b32 v46, 3, v43")
    e("v_add3_u32 v12, v40, v45, v46")
    e("s_lshl_b32 s39, s36, 14")
    e("v_add_u32 v12, s39, v12")
    for t in range(1, 4): e(f"v_xor_b32 v{12+t}, {t<<5}, v12")
    e("s_waitcnt lgkmcnt(0)")
    e("s_mul_i32 s43, s46, 48"); e("s_lshl_b32 s44, s47, 2"); e("s_add_u32 s43, s43, s44"); e("s_lshl_b32 s43, s43, 17")
    e("s_add_u32 s16, s12, s43"); e("s_addc_u32 s17, s13, 0"); e("s_and_b32 s17, s17, 0xffff")
    e("s_mov_b32 s18, 524288"); e("s_mov_b32 s19, 0x20000")
    e("s_lshl_b32 s43, s48, 7")
    e("s_add_u32 s20, s4, s43"); e("s_addc_u32 s21, s5, 0"); e("s_and_b32 s21, s21, 0xffff")
    e("s_sub_u32 s22, 5242880, s43"); e("s_mov_b32 s23, 0x20000")
    e("s_mov_b32 s24, s6"); e("s_and_b32 s25, s7, 0xffff"); e("s_mov_b32 s26, 1966080"); e("s_mov_b32 s27, 0x20000")
    ACC = 64
    OB = 128
    AF = 192
    def loads_wo(s):
        slot = s % PD
        e(f"s_mov_b32 s43, {s*40960}")
        e(f"s_add_u32 m0, s39, {slot*4096}")
        e("s_nop 0")
        for i in range(4):
            g.vmem(f"buffer_load_dwordx4 v{8+i}, s[20:23], s43 offen offset:{i*1024}{NT} lds", f"s{s}")
    def loads_o(s):
        slot = s % PD
        e(f"s_mov_b32 s44, {s*1024}")
        for mi in range(4):
            g.vmem(f"buffer_load_dwordx4 {vr(OB+slot*16+mi*4)}, v{4+mi}, s[16:19], s44 offen", f"s{s}")
    for s in range(PD):
        loads_wo(s); loads_o(s)
    for s in range(32):
        slot = s % PD
        g.wait_vm(f"s{s}")
        for t in range(4):
            e(f"ds_read_b64_tr_b16 {vr(AF+t*4,2)}, v{12+t} offset:{slot*4096}")
            e(f"ds_read_b64_tr_b16 {vr(AF+t*4+2,2)}, v{12+t} offset:{slot*4096+2048}")
        e("s_waitcnt lgkmcnt(0)")
        if s + PD < 32: loads_wo(s + PD)
        for t in range(4):
            for mi in range(4):
                d = ACC + (mi * 4 + t) * 4
                cc = "0" if s == 0 else vr(d)
                e(f"v_mfma_f32_16x16x32_bf16 {vr(d)}, {vr(AF+t*4)}, {vr(OB+slot*16+mi*4)}, {cc}")
        if s + PD < 32: loads_o(s + PD)
    e("s_barrier")
    e("v_lshlrev_b32 v40, 4, v1")
    e("v_add_u32 v41, s39, v40")
    e("s_nop 7")
    for tl in range(16):
        e(f"ds_write_b128 v41, {vr(ACC+tl*4)} offset:{tl*1024}")
    e("s_waitcnt lgkmcnt(0)")
    e("s_barrier")
    e("s_lshl_b32 s43, s36, 12")
    e("v_add_u32 v41, s43, v40")
    for ww in range(4):
        for t in range(4):
            e(f"ds_read_b128 {vr(128+(ww*4+t)*4)}, v41 offset:{ww*16384+t*1024}")
        if ww == 2: e("s_waitcnt lgkmcnt(4)")
    e("s_waitcnt lgkmcnt(0)")
    for t in range(4):
        for ww in range(1, 4):
            for x in range(0, 4, 2):
                d = 128 + t * 4 + x; s_ = 128 + (ww * 4 + t) * 4 + x
                e(f"v_pk_add_f32 v[{d}:{d+1}], v[{d}:{d+1}], v[{s_}:{s_+1}]")
    e("s_lshl_b32 s43, s47, 6"); e("s_lshl_b32 s44, s36, 4"); e("s_add_u32 s43, s43, s44")
    e("v_add_u32 v40, s43, v2"); e("v_mul_u32_u24 v40, 2560, v40")
    e("s_mul_i32 s43, s46, 1280"); e("s_lshl_b32 s44, s48, 7"); e("s_add_u32 s43, s43, s44")
    e("v_lshlrev_b32 v41, 3, v3")
    e("v_add3_u32 v40, v40, v41, s43")
    for t in range(4):
        d = 128 + t * 4
        e(f"v_cvt_pk_bf16_f32 v{44+2*t}, v{d}, v{d+1}")
        e(f"v_cvt_pk_bf16_f32 v{45+2*t}, v{d+2}, v{d+3}")
    for t in range(4):
        e(f"buffer_store_dwordx2 v[{44+2*t}:{45+2*t}], v40, s[24:27], 0 offen offset:{t*32}")
    e("s_waitcnt vmcnt(0)")
    e("L_k2_end:")
    e("s_endpgm")
    return ".text\n" + kernel_begin(name) + g.text()

def main(fname):
    src = open("concat_heads__mha_block_cached__mha_block_cached__near_ridge.s.ref").read()
    hdr = [l for l in src.splitlines() if l.startswith(";") and "@launch" not in l and "Override" not in l and "grid=ceil" not in l]
    k1, k2 = "attn_kernel", "oproj_kernel"
    out = "\n".join(hdr) + "\n"
    out += header([f"; @launch kernel={k1} grid=(256,1,1) block=(256,1,1) lds=163840",
                   f"; @launch kernel={k2} grid=(240,1,1) block=(256,1,1) lds=65536"])
    out += gen_k1(k1) + gen_k2(k2)
    out += kernel_desc(k1, vgpr=512, sgpr=64, accum=256)
    out += kernel_desc(k2, vgpr=256, sgpr=64, accum=256)
    open(fname, "w").write(out)

if __name__ == "__main__":
    main(sys.argv[1] if len(sys.argv) > 1 else "v1.s")
```

```python
import sys
from gen_common import *

STAMP = False
OPT = {}
NT = " nt"

def vr(b, n=4): return f"v[{b}:{b+n-1}]"
def ar(b, n=4): return f"a[{b}:{b+n-1}]"

def cost(s):
    op = s.split()[0]
    if op.startswith("v_mfma"): return 16
    if op in ("v_exp_f32", "v_rcp_f32"): return 8
    if op.startswith("v_"): return 4
    if op == "ds_write_b128": return 24
    if op == "ds_write_b64": return 10
    if op.startswith("ds_"): return 5
    if op == "s_barrier": return 40
    if op == "s_waitcnt": return 40 if "lgkm" in s else 4
    if op == "s_nop": return 4 * (int(s.split()[1]) + 1)
    if op.startswith("buffer_"): return 16
    if op.startswith(";") or op.endswith(":"): return 0
    return 4

class G:
    def __init__(self, plan=None):
        self.L = []; self.vm = []; self.nst = 0
        self.pos = 0
        self.events = {}
        self.bg = []
        self.plan = plan
        self.m0 = None; self.so = {}
        self.inbg = False
        self.issued = {}
        self.needs = []
    def landed_est(self):
        T = float(OPT.get("T", 1150))
        best = -1e9
        for (x, p) in self.needs:
            best = max(best, x + 1 + (self.pos - p) / T)
        return best
    def raw(self, s):
        self.L.append(s); self.pos += cost(s)
    def e(self, s):
        self.raw(s)
        if not self.inbg: self.pump()
    def c(self, s): self.L.append("; " + s)
    def mark(self, name):
        self.events[name] = self.pos
        self.pump()
    def vmem(self, s, tag):
        self.raw(s); self.vm.append(tag)
    def add_bg(self, items): self.bg += items
    def emit_item(self, it):
        self.inbg = True
        if it.get("so") is not None:
            sreg, val = it["so"]
            if self.so.get(sreg) != val:
                self.raw(f"s_mov_b32 s{sreg}, {val}"); self.so[sreg] = val
        if it.get("m0") is not None and self.m0 != it["m0"]:
            base, off = it["m0"]
            self.raw(f"s_add_u32 m0, s{base}, {off}"); self.raw("s_nop 0"); self.m0 = it["m0"]
        self.vmem(it["instr"], it["tag"])
        self.issued[it["key"]] = self.pos
        self.inbg = False
    def pump(self):
        while self.bg:
            it = self.bg[0]
            if it["gate"] is not None and it["gate"] not in self.events: break
            if "stage" in it and OPT.get("sched", "flow") == "flow":
                m, ii = it["stage"]
                if m + (ii + 1) / 4.0 > self.landed_est() + float(OPT.get("D", 3.0)): break
                self.bg.pop(0); self.emit_item(it); continue
            due = it.get("due")
            if due is None:
                due = self.plan.get(it["key"]) if self.plan is not None else None
            if due is None:
                if self.plan is not None: break
                due = 0
            if self.pos < due: break
            self.bg.pop(0); self.emit_item(it)
    def flush(self, tag):
        idx = max([i for i, it in enumerate(self.bg) if it["tag"] == tag], default=None)
        if idx is None: return
        for it in self.bg[:idx + 1]:
            assert it["gate"] is None or it["gate"] in self.events, (it["key"], it["gate"])
            self.emit_item(it)
        self.bg = self.bg[idx + 1:]
    def wait_vm(self, tag):
        self.flush(tag)
        self.events.setdefault("need_" + tag, self.pos)
        if tag[0] in "SR" and tag[1:].isdigit(): self.needs.append((int(tag[1:]), self.pos))
        idx = max([i for i, t in enumerate(self.vm) if t == tag], default=None)
        if idx is None: return
        n = len(self.vm) - 1 - idx
        assert n <= 63, n
        self.raw(f"s_waitcnt vmcnt({n})")
        self.vm = self.vm[idx + 1:]
    def wait_vm_all(self):
        assert not self.bg
        self.raw("s_waitcnt vmcnt(0)"); self.vm = []
    def weave(self, prim, sec, start=0, frac=None):
        if frac is None: frac = float(OPT.get('frac', 0.55))
        n = len(prim); m = len(sec)
        span = max(1, int((n - start) * frac))
        k = 0
        for i, p in enumerate(prim):
            self.e(p)
            if i >= start:
                tgt = min(m, int(round((i - start + 1) * m / span)))
                while k < tgt:
                    self.e(sec[k]); k += 1
        while k < m:
            self.e(sec[k]); k += 1
    def stamp(self):
        if not STAMP or self.nst >= 22: return
        k = self.nst; self.nst += 1
        self.raw(f"s_memtime s[{52+2*k}:{53+2*k}]")
    def stamp_out(self, wsreg, off):
        if not STAMP: return
        e = self.raw
        e("s_waitcnt lgkmcnt(0) vmcnt(0)")
        e("s_memrealtime s[50:51]")
        e("s_waitcnt lgkmcnt(0)")
        e(f"s_add_u32 s16, s{wsreg}, {off}"); e(f"s_addc_u32 s17, s{wsreg+1}, 0"); e("s_and_b32 s17, s17, 0xffff")
        e("s_mov_b32 s18, 1048576"); e("s_mov_b32 s19, 0x20000")
        e("s_lshl_b32 s3, s2, 10"); e("s_lshl_b32 s43, s36, 8"); e("s_add_u32 s3, s3, s43")
        e("v_mov_b32 v40, s3")
        for k in range(self.nst):
            e(f"v_mov_b32 v41, s{52+2*k}")
            e(f"buffer_store_dword v41, v40, s[16:19], 0 offen offset:{4*k}")
            e("s_nop 0")
        e("s_getreg_b32 s43, hwreg(HW_REG_XCC_ID)")
        e("v_mov_b32 v41, s43"); e("buffer_store_dword v41, v40, s[16:19], 0 offen offset:244")
        e("v_mov_b32 v41, s50"); e("buffer_store_dword v41, v40, s[16:19], 0 offen offset:248")
        e("s_nop 0")
        e("v_mov_b32 v41, s100"); e("buffer_store_dword v41, v40, s[16:19], 0 offen offset:252")
        e("s_waitcnt vmcnt(0)")
    def text(self): return "\n".join(self.L) + "\n"

SLOT = 16384
NSLOT = 7
E = NSLOT * SLOT
QB = [72 * 1024, 32 * 1024, 112 * 1024]
NREG = 5

def gen_k1(name, plan=None):
    g = G(plan); e = g.e
    SO_Q, SO_K = 44, 45
    e("s_cmp_ge_u32 s2, 256")
    e("s_cbranch_scc1 L_k1_end")
    if STAMP: e("s_memrealtime s[100:101]")
    g.stamp()
    e("s_and_b32 s14, s2, 7")
    e("s_lshr_b32 s46, s14, 2")
    e("s_mul_i32 s3, s46, 40")
    e("s_load_dwordx8 s[4:11], s[0:1], s3")
    e("s_load_dwordx2 s[12:13], s[0:1], 96")
    e("v_lshrrev_b32 v2, 6, v0")
    e("v_and_b32 v1, 63, v0")
    e("s_lshr_b32 s15, s2, 3")
    e("v_readfirstlane_b32 s36, v2")
    e("v_and_b32 v2, 15, v1")
    e("v_lshrrev_b32 v3, 4, v1")
    e("s_and_b32 s47, s14, 3")
    e("s_lshl_b32 s47, s47, 3")
    e("s_and_b32 s48, s15, 7")
    e("s_add_u32 s47, s47, s48")
    e("s_lshr_b32 s48, s15, 3")
    e("s_lshl_b32 s39, s36, 12")
    e("s_lshr_b32 s49, s15, 4"); e("s_lshl_b32 s49, s49, 3"); e("s_and_b32 s43, s15, 7"); e("s_add_u32 s49, s49, s43")
    e("s_lshl_b32 s49, s49, 2"); e("s_add_u32 s49, s49, s36")
    e("v_mul_u32_u24 v41, 43, v1"); e("v_lshrrev_b32 v41, 9, v41")
    e("v_mul_u32_u24 v42, 12, v41"); e("v_sub_u32 v42, v1, v42")
    e("v_mul_u32_u24 v42, 1280, v42"); e("v_lshlrev_b32 v41, 7, v41"); e("v_add_u32 v40, v41, v42")
    e("v_lshlrev_b32 v41, 19, v3"); e("v_lshlrev_b32 v42, 7, v2"); e("v_add_u32 v42, v41, v42")
    e("v_lshlrev_b32 v46, 8, v3")
    e("v_add_u32 v46, s39, v46")
    for i in range(4):
        e(f"v_add_u32 v47, {4*i}, v3")
        e("v_xor_b32 v47, v2, v47")
        e("v_lshlrev_b32 v47, 4, v47")
        e(f"v_add_u32 v{4+i}, v46, v47")
    e("s_mul_i32 s42, s36, 6144")
    e("v_lshrrev_b32 v48, 3, v1")
    e("s_mul_i32 s43, s36, 48")
    e("v_add_u32 v48, s43, v48")
    e("v_mul_u32_u24 v48, 1280, v48")
    e("v_and_b32 v49, 7, v1")
    e("v_xor_b32 v50, v49, v3")
    e("v_xor_b32 v51, 4, v50")
    e("v_lshlrev_b32 v50, 4, v50")
    e("v_lshlrev_b32 v51, 4, v51")
    for i in range(6):
        src = 50 if i % 2 == 0 else 51
        k = 8 * i * 1280 - (i & 3) * 1024
        if k: e(f"v_add_u32 v{164+i}, {k}, v48"); e(f"v_add_u32 v{164+i}, v{164+i}, v{src}")
        else: e(f"v_add_u32 v{164+i}, v48, v{src}")
    e("s_lshl_b32 s43, s36, 4")
    e("v_add_u32 v48, s43, v3")
    e("v_lshlrev_b32 v48, 13, v48")
    e("v_lshlrev_b32 v49, 1, v3")
    e("v_xor_b32 v50, v2, v49")
    e("v_xor_b32 v51, 8, v50")
    e("v_lshlrev_b32 v50, 4, v50")
    e("v_lshlrev_b32 v51, 4, v51")
    for i in range(4):
        src = 50 if ((i >> 1) & 1) == 0 else 51
        k = 4 * i * 8192 - 1024 * i
        if k: e(f"v_add_u32 v{160+i}, {k}, v48"); e(f"v_add_u32 v{160+i}, v{160+i}, v{src}")
        else: e(f"v_add_u32 v{160+i}, v48, v{src}")
    e("s_mul_i32 s50, s49, 15360")
    e("s_lshl_b32 s51, s49, 13")
    e("s_and_b32 s3, s14, 3"); e("s_lshl_b32 s3, s3, 11")
    e("s_lshl_b32 s43, s48, 6"); e("s_add_u32 s43, s43, s47"); e("s_lshl_b32 s43, s43, 17")
    e("s_waitcnt lgkmcnt(0)")
    g.stamp()
    TF = OPT.get("tf", " nt")
    e("s_mov_b32 s88, s4"); e("s_and_b32 s89, s5, 0xffff"); e("s_mov_b32 s90, 983040"); e("s_mov_b32 s91, 0x20000")
    e("s_add_u32 s92, s10, s3"); e("s_addc_u32 s93, s11, 0"); e("s_and_b32 s93, s93, 0xffff")
    e("s_sub_u32 s94, 5242880, s3"); e("s_mov_b32 s95, 0x20000")
    def touches(V):
        if OPT.get("touch", "1") != "1" or V != "A": return
        def tx(s0, nl):
            m = (1 << nl) - 1
            e(f"s_mov_b32 exec_lo, 0x{m & 0xffffffff:x}"); e(f"s_mov_b32 exec_hi, 0x{m >> 32:x}")
            e(f"s_add_u32 s43, s50, {s0 * 128}")
            g.vmem(f"buffer_load_dword v60, v40, s[88:91], s43 offen{TF}", "T")
        def tw(s0, nl):
            m = (1 << nl) - 1
            e(f"s_mov_b32 exec_lo, 0x{m & 0xffffffff:x}"); e(f"s_mov_b32 exec_hi, 0x{m >> 32:x}")
            e(f"s_add_u32 s43, s51, {s0 * 524288}")
            g.vmem(f"buffer_load_dword v61, v42, s[92:95], s43 offen{TF}", "T")
        tx(0, 60); tw(0, 64); tw(4, 64); tx(5, 60); tw(8, 32)
        e("s_mov_b64 exec, -1")
    e("s_add_u32 s20, s6, s43"); e("s_addc_u32 s21, s7, 0"); e("s_and_b32 s21, s21, 0xffff")
    e("s_sub_u32 s22, 33554432, s43"); e("s_mov_b32 s23, 0x20000")

    def kv_items(n):
        r, jj = n // 16, n % 16
        isK = jj < 8; j = jj % 8
        slot = (n % NSLOT) * SLOT
        its = []
        for ii in range(4):
            if isK: ins = f"buffer_load_dwordx4 v{4+ii}, s[20:23], s{SO_K} offen offset:{ii*1024}{NT} lds"
            else: ins = f"buffer_load_dwordx4 v{8+(ii&1)}, s[24:27], s{SO_K} offen offset:{ii*1024}{NT} lds"
            its.append(dict(key=f"S{n}.{ii}", gate=f"free_S{n}", tag=f"S{n}", m0=(39, slot), so=(SO_K, r*4194304 + j*16384), instr=ins))
        return its
    def kreg_items(n):
        its = []
        for ii in range(4):
            ins = f"buffer_load_dwordx4 {vr(176+(n-2)*16+ii*4)}, v{4+ii}, s[20:23], s{SO_K} offen offset:{ii*1024}{NT}"
            its.append(dict(key=f"S{n}.{ii}", gate=None, tag=f"R{n}", m0=None, so=(SO_K, n*16384), instr=ins))
        return its
    QF = OPT.get("qf", " nt")
    def q_items(i, V=""):
        buf = QB[i % 3]; tag = f"Q{i}"; its = []
        for ii in range(6):
            its.append(dict(key=f"{V}Q{i}.{ii}", gate=f"{V}free_Q{i}", tag=tag, m0=(42, buf + (4096 if ii >= 4 else 0)), so=(SO_Q, i*128),
                            instr=f"buffer_load_dwordx4 v{164+ii}, s[16:19], s{SO_Q} offen offset:{(ii&3)*1024}{QF} lds"))
        for ii in range(4):
            its.append(dict(key=f"{V}Q{i}.{6+ii}", gate=f"{V}free_Q{i}", tag=tag, m0=(39, buf + 24576), so=(SO_Q, i*524288),
                            instr=f"buffer_load_dwordx4 v{160+ii}, s[28:31], s{SO_Q} offen offset:{ii*1024}{QF} lds"))
        return its
    def now(its):
        for it in its: g.emit_item(it)

    e("s_mul_i32 s43, s48, 245760")
    e("s_add_u32 s16, s4, s43"); e("s_addc_u32 s17, s5, 0"); e("s_and_b32 s17, s17, 0xffff")
    e("s_mov_b32 s18, 245760"); e("s_mov_b32 s19, 0x20000")
    e("s_lshl_b32 s43, s47, 8")
    e("s_add_u32 s28, s10, s43"); e("s_addc_u32 s29, s11, 0"); e("s_and_b32 s29, s29, 0xffff")
    e("s_sub_u32 s30, 5242880, s43"); e("s_mov_b32 s31, 0x20000")
    def setup_rest():
        e("s_and_b32 s37, s36, 1")
        e("s_lshr_b32 s38, s36, 1")
        e("s_mov_b32 s40, 0x3e0293ee"); e("s_mov_b32 s41, 0x3e0293ee")
        e("s_lshl_b32 s43, s48, 6"); e("s_add_u32 s43, s43, s47"); e("s_lshl_b32 s43, s43, 17")
        e("s_add_u32 s24, s8, s43"); e("s_addc_u32 s25, s9, 0"); e("s_and_b32 s25, s25, 0xffff")
        e("s_sub_u32 s26, 33554432, s43"); e("s_mov_b32 s27, 0x20000")
        e("s_mul_i32 s43, s46, 6291456")
        e("s_add_u32 s32, s12, s43"); e("s_addc_u32 s33, s13, 0"); e("s_and_b32 s33, s33, 0xffff")
        e("s_mov_b32 s34, 6291456"); e("s_mov_b32 s35, 0x20000")
        e("v_lshlrev_b32 v46, 8, v3"); e("v_add_u32 v46, s39, v46")
        for p in range(2):
            e(f"v_add_u32 v41, {4*p}, v3")
            e("v_lshlrev_b32 v41, 1, v41")
            e("v_xor_b32 v41, v2, v41")
            e("v_lshlrev_b32 v41, 4, v41")
            e(f"v_add_u32 v{8+p}, v46, v41")
        e("s_lshl_b32 s43, s38, 5")
        e("v_add_u32 v40, s43, v2"); e("v_lshlrev_b32 v40, 8, v40")
        e("v_xor_b32 v41, v3, v2"); e("v_lshlrev_b32 v41, 4, v41")
        e("v_add_u32 v10, v40, v41")
        e("v_lshrrev_b32 v42, 2, v2"); e("v_and_b32 v43, 3, v2")
        e("v_lshlrev_b32 v44, 2, v3"); e("v_add_u32 v44, v44, v42")
        e("v_add_u32 v40, s43, v44"); e("v_lshlrev_b32 v40, 8, v40")
        e("v_and_b32 v45, 7, v44")
        e("s_lshl_b32 s51, s38, 2")
        e("v_xor_b32 v45, s51, v45"); e("v_lshlrev_b32 v45, 5, v45")
        e("v_lshlrev_b32 v46, 3, v43")
        e("v_add3_u32 v11, v40, v45, v46")
        e("v_lshlrev_b32 v12, 4, v1")
        e("s_mul_i32 s43, s37, 6144")
        e("v_lshrrev_b32 v40, 3, v2"); e("v_lshlrev_b32 v40, 10, v40")
        e("v_and_b32 v41, 7, v2"); e("v_lshlrev_b32 v41, 7, v41")
        e("v_lshrrev_b32 v47, 1, v2"); e("v_and_b32 v47, 7, v47"); e("v_xor_b32 v47, v3, v47"); e("v_lshlrev_b32 v47, 4, v47")
        e("v_add3_u32 v170, v40, v41, v47")
        e("v_add_u32 v170, s43, v170")
        e("v_lshlrev_b32 v40, 3, v3"); e("v_add_u32 v40, v40, v42"); e("v_lshlrev_b32 v40, 8, v40")
        e("v_and_b32 v41, 1, v3"); e("v_lshlrev_b32 v41, 2, v41"); e("v_add_u32 v41, v41, v42")
        e("v_xor_b32 v41, s51, v41"); e("v_lshlrev_b32 v41, 5, v41")
        e("v_add3_u32 v171, v40, v41, v46")
        e("v_add_u32 v171, 24576, v171")
        e("v_mov_b32 v40, 0x3f803f80")
        for i in range(4): e(f"v_accvgpr_write_b32 a{176+i}, v40")

    QSET = [96, 136]
    def q_reads(i, ks, st):
        L_ = []
        buf = QB[i % 3]; base = QSET[st]
        L_.append(f"v_add_u32 v13, {buf}, v170")
        if ks: L_.append("v_xor_b32 v13, 64, v13")
        L_.append(f"v_add_u32 v14, {buf + ks*8192}, v171")
        for t in range(1, 4): L_.append(f"v_xor_b32 v{14+t}, {t<<5}, v14")
        for t in range(4):
            L_.append(f"ds_read_b64_tr_b16 {ar(base+t*4,2)}, v{14+t}")
            L_.append(f"ds_read_b64_tr_b16 {ar(base+t*4+2,2)}, v{14+t} offset:1024")
        for uu in range(6):
            imm = (uu // 3) * 12288 + (uu % 3) * 2048
            L_.append(f"ds_read_b128 {ar(base+16+uu*4)}, v13 offset:{imm}")
        return L_
    def q_mfma(st, first):
        L_ = []
        base = QSET[st]
        for t in range(4):
            for uu in range(6):
                d = 64 + (t * 6 + uu) * 4
                cc = "0" if first else vr(d)
                L_.append(f"v_mfma_f32_16x16x32_bf16 {vr(d)}, {ar(base+t*4)}, {ar(base+16+uu*4)}, {cc}")

        return L_
    def head(V):
        g.m0 = None; g.so = {}
        g.mark("free_S0"); g.mark("free_S1")
        for i in range(3): g.mark(f"{V}free_Q{i}")
        touches(V)
        kits = kv_items(0) + kv_items(1)
        for n in range(2, 2 + NREG): kits += kreg_items(n)
        for k, it in enumerate(kits): it["gate"] = f"{V}free_Q9"; it["key"] = f"{V}KIT{k}"
        if OPT.get("nok"): kits = []
        now(q_items(0, V))
        g.stamp()
        its = q_items(1, V) + q_items(2, V)
        for it in its: it["due"] = 0
        npre = int(OPT.get("npre", 10))
        now(its[:npre]); its = its[npre:]
        setup_rest()
        bg = its
        for i in range(3, 10): bg += q_items(i, V)
        bg += kits
        g.add_bg(bg)
        g.stamp()
        g.wait_vm("Q0")
        e("s_barrier")
        g.stamp()
        for x in q_reads(0, 0, 0): e(x)
        e("s_waitcnt lgkmcnt(0)")
        for i in range(10):
            dbg = OPT.get("qdbg") and i in [int(x) for x in OPT.get("qdbg").split(",")]
            if dbg or OPT.get("qtop"): g.stamp()
            g.weave(q_mfma(0, i == 0), q_reads(i, 1, 1))
            if dbg: g.stamp()
            e("s_waitcnt lgkmcnt(0)")
            if i < 9:
                if dbg: g.stamp()
                g.wait_vm(f"Q{i+1}")
                if dbg: g.stamp()
                e("s_barrier")
                if dbg: g.stamp()
                g.mark(f"{V}free_Q{i+3}")
                g.weave(q_mfma(1, False), q_reads(i + 1, 0, 0))
                if dbg: g.stamp()
                e("s_waitcnt lgkmcnt(0)")
            else:
                for x in q_mfma(1, False): e(x)
        g.stamp()
        g.flush(f"R{1+NREG}")
        assert not g.bg
        if OPT.get("stopq"):
            g.wait_vm_all()
            g.raw("s_branch L_k1_fin")
    mode = OPT.get("heads", "AB")
    nst0 = g.nst
    if mode == "AB":
        e("s_and_b32 s43, s48, 1")
        e("s_cmp_eq_u32 s43, 1")
        g.raw("s_cbranch_scc1 L_headB")
        vm0 = list(g.vm)
        head("A")
        g.raw("s_branch L_merge")
        vmA = list(g.vm); posA = g.pos
        g.raw("L_headB:")
        g.vm = list(vm0); g.nst = nst0
        head("B")
        assert g.vm == vmA, (g.vm, vmA)
        g.raw("L_merge:")
    else:
        head(mode)
    g.m0 = None; g.so = {}
    e("s_barrier")
    g.stamp()
    e("s_mul_i32 s43, s37, 48")
    e("v_add_u32 v40, s43, v2"); e("v_lshlrev_b32 v40, 8, v40")
    e("s_lshl_b32 s43, s38, 3")
    e("v_lshrrev_b32 v41, 1, v3"); e("v_add_u32 v41, s43, v41"); e("v_xor_b32 v41, v41, v2"); e("v_lshlrev_b32 v41, 4, v41")
    e("v_and_b32 v42, 1, v3"); e("v_lshlrev_b32 v42, 3, v42")
    e("v_add3_u32 v40, v40, v41, v42")
    e(f"v_add_u32 v40, {E}, v40")
    for t in range(1, 4): e(f"v_xor_b32 v{40+t}, {t<<5}, v40")
    k = 0
    for t in range(4):
        for uu in range(6):
            d = 64 + (t * 6 + uu) * 4
            b = 44 + 2 * (k % 4); k += 1
            e(f"v_cvt_pk_bf16_f32 v{b}, v{d}, v{d+1}")
            e(f"v_cvt_pk_bf16_f32 v{b+1}, v{d+2}, v{d+3}")
            imm = (uu // 3) * 24576 + (uu % 3) * 4096
            e(f"ds_write_b64 v{40+t}, v[{b}:{b+1}] offset:{imm}")
    e("s_waitcnt lgkmcnt(0)")
    e("s_barrier")
    e("s_mul_i32 s43, s37, 48")
    e("v_add_u32 v40, s43, v2"); e("v_lshlrev_b32 v40, 8, v40")
    e("v_xor_b32 v41, v3, v2"); e("v_lshlrev_b32 v41, 4, v41")
    e("v_add_u32 v40, v40, v41")
    e(f"v_add_u32 v40, {E}, v40")
    for s in range(1, 4): e(f"v_xor_b32 v{40+s}, {s<<6}, v40")
    cnt = 0
    for r in range(2):
        for u in range(3):
            for s in range(4):
                e(f"ds_read_b128 {ar(((r*3+u)*4+s)*4)}, v{40+s} offset:{r*24576+u*4096}")
                cnt += 1
                if cnt % 12 == 0: e("s_waitcnt lgkmcnt(0)")

    bg = []
    for n in range(2 + NREG, 32):
        its = kv_items(n)
        for ii, it in enumerate(its): it["stage"] = (n, ii)
        bg += its
    g.add_bg(bg)

    KSET = [96, 112]
    def k_reads(n, tau, st):
        L_ = []
        slot = (n % NSLOT) * SLOT
        L_.append(f"v_add_u32 v13, {slot + tau*4096}, v10")
        for s in range(1, 4): L_.append(f"v_xor_b32 v{13+s}, {s<<6}, v13")
        for s in range(4):
            L_.append(f"ds_read_b128 {ar(KSET[st]+s*4)}, v{13+s}")
        return L_
    def s_mfma(r, j, tau, st):
        L_ = []
        for s in range(4):
            for u in range(3):
                d = 64 + (j * 3 + u) * 8 + 4 * tau
                cc = "0" if s == 0 else vr(d)
                L_.append(f"v_mfma_f32_16x16x32_bf16 {vr(d)}, {ar(KSET[st]+s*4)}, {ar(((r*3+u)*4+s)*4)}, {cc}")
        return L_
    def v_reads(n, hh, st):
        L_ = []
        slot = (n % NSLOT) * SLOT
        L_.append(f"v_add_u32 v13, {slot}, v11")
        if hh: L_.append(f"v_xor_b32 v13, {4<<5}, v13")
        for t in range(1, 4): L_.append(f"v_xor_b32 v{13+t}, {t<<5}, v13")
        for t in range(4):
            L_.append(f"ds_read_b64_tr_b16 {ar(KSET[st]+t*4,2)}, v{13+t}")
            L_.append(f"ds_read_b64_tr_b16 {ar(KSET[st]+t*4+2,2)}, v{13+t} offset:4096")
        return L_
    def pv_mfma(j, hh, st):
        L_ = []
        for t in range(4):
            lam = 4 * hh + t
            for u in range(3):
                d = 64 + (lam * 3 + u) * 8 + 4
                p = 64 + (j * 3 + u) * 8
                cc = "0" if j == 0 else vr(d)
                L_.append(f"v_mfma_f32_16x16x32_bf16 {vr(d)}, {ar(KSET[st]+t*4)}, {vr(p)}, {cc}")
        return L_
    parked = set(range(2, 2 + NREG))
    def need(n):
        if n in parked: return
        g.wait_vm(f"S{n}")
    def unpark(n):
        if n not in parked: return []
        g.wait_vm(f"R{n}")
        L_ = [f"v_add_u32 v18, s39, v12", f"v_add_u32 v18, {(n % NSLOT)*SLOT}, v18"]
        for ii in range(4):
            L_.append(f"ds_write_b128 v18, {vr(176+(n-2)*16+ii*4)} offset:{ii*1024}")
        return L_

    for r in range(2):
        n0 = 16 * r
        g.c(f"==== round {r} S phase")
        g.stamp()
        g.mark(f"round{r}")
        need(n0)
        e("s_barrier")
        if r == 1: g.mark(f"free_S{n0-1+7}")
        for x in k_reads(n0, 0, 0): e(x)
        e("s_waitcnt lgkmcnt(0)")
        def maxops(j, first):
            L_ = []
            for u in range(3):
                R = 64 + (j * 3 + u) * 8
                if first:
                    L_.append(f"v_max3_f32 v{21+u}, v{R}, v{R+1}, v{R+2}")
                    L_.append(f"v_max3_f32 v{21+u}, v{21+u}, v{R+3}, v{R+4}")
                    L_.append(f"v_max3_f32 v{21+u}, v{21+u}, v{R+5}, v{R+6}")
                    L_.append(f"v_max_f32 v{21+u}, v{21+u}, v{R+7}")
                else:
                    for x in range(0, 8, 2):
                        L_.append(f"v_max3_f32 v{21+u}, v{21+u}, v{R+x}, v{R+x+1}")
            return [L_[u * 4 + c] for c in range(4) for u in range(3)]
        for j in range(8):
            n = n0 + j
            up = unpark(n + 1)
            g.weave(s_mfma(r, j, 0, 0), k_reads(n, 1, 1) + up)
            e("s_waitcnt lgkmcnt(0)")
            mx = maxops(j - 1, j == 1) if j >= 1 else []
            if j < 7:
                need(n + 1)
                e("s_barrier")
                g.mark(f"free_S{n+7}")
                g.weave(s_mfma(r, j, 1, 1), k_reads(n + 1, 0, 0) + mx, frac=1.0)
                e("s_waitcnt lgkmcnt(0)")
            else:
                e("s_barrier")
                g.mark(f"free_S{n+7}")
                g.weave(s_mfma(r, j, 1, 1), mx, frac=1.0)
        g.c("---- softmax: max")
        g.stamp()
        e("s_nop 7"); e("s_nop 1")
        for x in maxops(7, False): e(x)
        for u in range(3): e(f"v_mov_b32 v{40+u}, v{21+u}")
        g.raw("s_nop 1")
        for u in range(3): e(f"v_permlane32_swap_b32 v{21+u}, v{40+u}")
        g.raw("s_nop 1")
        for u in range(3): e(f"v_max_f32 v{21+u}, v{21+u}, v{40+u}")
        for u in range(3): e(f"v_mov_b32 v{40+u}, v{21+u}")
        g.raw("s_nop 1")
        for u in range(3): e(f"v_permlane16_swap_b32 v{21+u}, v{40+u}")
        g.raw("s_nop 1")
        for u in range(3): e(f"v_max_f32 v{21+u}, v{21+u}, v{40+u}")
        e("s_mul_i32 s43, s36, 768")
        e("v_lshlrev_b32 v43, 2, v1")
        e(f"v_add_u32 v43, {E}, v43")
        e("v_add_u32 v44, s43, v43")
        for u in range(3): e(f"ds_write_b32 v44, v{21+u} offset:{u*256}")
        e("s_xor_b32 s43, s36, 2"); e("s_mul_i32 s43, s43, 768")
        e("v_add_u32 v45, s43, v43")
        e("s_waitcnt lgkmcnt(0)")
        e("s_barrier")
        for u in range(3): e(f"ds_read_b32 v{40+u}, v45 offset:{u*256}")
        e("s_waitcnt lgkmcnt(0)")
        for u in range(3): e(f"v_max_f32 v{21+u}, v{21+u}, v{40+u}")
        for u in range(3): e(f"v_mul_f32 v{46+2*u}, s40, v{21+u}")
        g.c("---- softmax: exp")
        g.stamp()
        pend = None
        first_l = [True] * 3
        def lmfma(p, u):
            cc = "0" if first_l[u] else vr(28 + 4 * u)
            first_l[u] = False
            e(f"v_mfma_f32_16x16x32_bf16 {vr(28+4*u)}, {ar(176)}, {vr(p)}, {cc}")
        for j in range(8):
            for u in range(3):
                R = 64 + (j * 3 + u) * 8
                for x in range(0, 8, 2):
                    e(f"v_pk_fma_f32 v[{R+x}:{R+x+1}], v[{R+x}:{R+x+1}], s[40:41], v[{46+2*u}:{47+2*u}] op_sel_hi:[1,0,0] neg_lo:[0,0,1] neg_hi:[0,0,1]")
                if pend is not None: lmfma(*pend)
                for x in range(8): e(f"v_exp_f32 v{R+x}, v{R+x}")
                for x in range(4): e(f"v_cvt_pk_bf16_f32 v{R+x}, v{R+2*x}, v{R+2*x+1}")
                pend = (R, u)
        e("s_nop 1")
        lmfma(*pend)
        e("s_mul_i32 s43, s36, 768")
        e("v_lshlrev_b32 v43, 2, v1")
        e(f"v_add_u32 v43, {E+4096}, v43")
        e("v_add_u32 v44, s43, v43")
        e("s_xor_b32 s43, s36, 2"); e("s_mul_i32 s43, s43, 768")
        e("v_add_u32 v45, s43, v43")
        e("s_nop 7")
        for u in range(3): e(f"ds_write_b32 v44, v{28+4*u} offset:{u*256}")
        e("s_waitcnt lgkmcnt(0)")
        g.c(f"==== round {r} PV phase")
        g.stamp()
        n8 = n0 + 8
        need(n8)
        e("s_barrier")
        for u in range(3): e(f"ds_read_b32 v{40+u}, v45 offset:{u*256}")
        for x in v_reads(n8, 0, 0): e(x)
        e("s_waitcnt lgkmcnt(0)")
        for u in range(3): e(f"v_add_f32 v{40+u}, v{40+u}, v{28+4*u}")
        for u in range(3): e(f"v_rcp_f32 v{24+u}, v{40+u}")
        for j in range(8):
            n = n8 + j
            g.weave(pv_mfma(j, 0, 0), v_reads(n, 1, 1))
            e("s_waitcnt lgkmcnt(0)")
            if j < 7:
                need(n + 1)
                e("s_barrier")
                g.mark(f"free_S{n+7}")
                g.weave(pv_mfma(j, 1, 1), v_reads(n + 1, 0, 0))
                e("s_waitcnt lgkmcnt(0)")
            else:
                for x in pv_mfma(j, 1, 1): e(x)
        g.c("---- O exchange")
        g.stamp()
        e("s_mul_i32 s43, s36, 12288")
        e(f"v_add_u32 v43, {E}, v12")
        e("v_add_u32 v44, s43, v43")
        e("s_xor_b32 s43, s36, 2"); e("s_mul_i32 s43, s43, 12288")
        e("v_add_u32 v45, s43, v43")
        e("s_nop 7")
        for lam in range(4, 8):
            for u in range(3):
                d = 64 + (lam * 3 + u) * 8 + 4
                e(f"ds_write_b128 v44, {vr(d)} offset:{((lam-4)*3+u)*1024}")
        e("s_waitcnt lgkmcnt(0)")
        e("s_barrier")
        for lam in range(4):
            for u in range(3):
                d = 64 + (lam * 3 + u) * 8
                e(f"ds_read_b128 {vr(d)}, v45 offset:{(lam*3+u)*1024}")
        e("s_waitcnt lgkmcnt(0)")
        for lam in range(4):
            for u in range(3):
                d = 64 + (lam * 3 + u) * 8
                for x in range(0, 4, 2):
                    e(f"v_pk_add_f32 v[{d+x}:{d+x+1}], v[{d+x}:{d+x+1}], v[{d+4+x}:{d+4+x+1}]")
        for lam in range(4):
            for u in range(3):
                d = 64 + (lam * 3 + u) * 8
                for x in range(4): e(f"v_mul_f32 v{d+x}, v{d+x}, v{24+u}")
        e("s_lshl_b32 s43, s48, 1"); e(f"s_add_u32 s43, s43, {r}"); e("s_mul_i32 s43, s43, 6")
        e("s_mul_i32 s51, s37, 3"); e("s_add_u32 s43, s43, s51")
        e("s_lshl_b32 s43, s43, 7")
        e("s_lshl_b32 s51, s47, 2"); e("s_add_u32 s43, s43, s51")
        e("s_lshl_b32 s51, s38, 1"); e("s_add_u32 s43, s43, s51")
        e("s_lshl_b32 s43, s43, 10")
        k = 0
        for u in range(3):
            for sg in range(2):
                t0 = 64 + ((2 * sg) * 3 + u) * 8
                t1 = 64 + ((2 * sg + 1) * 3 + u) * 8
                b = 52 + 4 * (k % 3)
                e(f"v_cvt_pk_bf16_f32 v{b}, v{t0}, v{t0+1}")
                e(f"v_cvt_pk_bf16_f32 v{b+1}, v{t0+2}, v{t0+3}")
                e(f"v_cvt_pk_bf16_f32 v{b+2}, v{t1}, v{t1+1}")
                e(f"v_cvt_pk_bf16_f32 v{b+3}, v{t1+2}, v{t1+3}")
                e(f"s_add_u32 s49, s43, {u*131072 + sg*1024}")
                g.vmem(f"buffer_store_dwordx4 {vr(b)}, v12, s[32:35], s49 offen{OPT.get('ost','')}", f"O{r}")
                g.raw("s_nop 1")
                k += 1
    g.mark("end")
    g.raw("L_k1_fin:")
    g.stamp()
    g.wait_vm_all()
    g.stamp()
    g.stamp_out(12, 16*1024*1024)
    g.raw("L_k1_end:")
    g.raw("s_endpgm")
    return g

def make_plan(g1):
    ev = g1.events
    plan = {}
    QD = int(OPT.get("QD", 56))
    for V in ("A", "B"):
        for i in range(3, 10):
            if f"{V}free_Q{i}" not in ev: continue
            p = ev[f"{V}free_Q{i}"]
            for ii in range(10): plan[f"{V}Q{i}.{ii}"] = p + QD * ii
    KD = int(OPT.get("KD", 105))
    for V in ("A", "B"):
        if f"{V}free_Q9" not in ev: continue
        p = ev[f"{V}free_Q9"] + QD * 10
        for k in range(8 + 4 * NREG): plan[f"{V}KIT{k}"] = p + KD * k
    r0, r1, end = ev["round0"], ev["round1"], ev["end"]
    rc = r1 - r0
    delta = rc / 64.0
    first = 2 + NREG
    keys = [(n, ii) for n in range(first, 32) for ii in range(4)]
    def idx(n, ii): return (n * 4 + ii)
    A = min(r0 + idx(n, ii) * delta - ev[f"free_S{n}"] for (n, ii) in keys if f"free_S{n}" in ev)
    A -= float(OPT.get("Aadj", 0))
    for (n, ii) in keys:
        plan[f"S{n}.{ii}"] = r0 + idx(n, ii) * delta - A
    if OPT.get("verbose"):
        for n in range(first, 32):
            print(n, "free", ev.get(f"free_S{n}"), "due", plan[f"S{n}.0"], "need", ev.get(f"need_S{n}"), file=sys.stderr)
        print("delta", delta, "A", A, "rc", rc, file=sys.stderr)
    return plan

def build_k1(name):
    g1 = gen_k1(name, None)
    plan = make_plan(g1)
    g2 = gen_k1(name, plan)
    return ".text\n" + kernel_begin(name) + g2.text()


PART_OFF = 32 * 1024 * 1024
def gen_k2(name):
    g = G({}); e = g.e
    NR = 4
    SL = 32768
    e("s_cmp_ge_u32 s2, 240")
    e("s_cbranch_scc1 L_k2_end")
    if STAMP: e("s_memrealtime s[100:101]")
    g.stamp()
    e("s_and_b32 s14, s2, 7")
    e("s_lshr_b32 s46, s14, 2")
    e("s_mul_i32 s3, s46, 40")
    e("s_add_u32 s3, s3, 32")
    e("s_load_dwordx2 s[4:5], s[0:1], s3")
    e("s_load_dwordx2 s[6:7], s[0:1], 80")
    e("s_load_dwordx4 s[8:11], s[0:1], 88")
    e("v_lshrrev_b32 v2, 6, v0")
    e("v_and_b32 v1, 63, v0")
    e("s_lshr_b32 s15, s2, 3")
    e("v_readfirstlane_b32 s36, v2")
    e("v_and_b32 v2, 15, v1")
    e("v_lshrrev_b32 v3, 4, v1")
    e("s_and_b32 s45, s14, 3")
    e("s_mul_i32 s47, s15, 52"); e("s_lshr_b32 s47, s47, 8")
    e("s_mul_i32 s48, s47, 5"); e("s_sub_u32 s48, s15, s48")
    e("s_add_u32 s49, s47, s48"); e("s_cmp_ge_u32 s49, 6"); e("s_cselect_b32 s43, 6, 0"); e("s_sub_u32 s49, s49, s43")
    e("s_mul_i32 s49, s49, 43"); e("s_lshr_b32 s49, s49, 4")
    if OPT.get("norot"): e("s_mov_b32 s49, 0")
    e("s_and_b32 s37, s36, 1")
    e("s_lshr_b32 s38, s36, 1")
    e("s_lshl_b32 s39, s36, 12")
    e("v_lshlrev_b32 v12, 4, v1")
    e("s_lshl_b32 s43, s36, 18")
    e("v_add_u32 v4, s43, v12")
    e(f"v_add_u32 v5, {131072-2048}, v4")
    e("s_lshl_b32 s43, s36, 4"); e("v_add_u32 v40, s43, v3"); e("v_mul_u32_u24 v40, 1280, v40")
    e("v_lshlrev_b32 v41, 1, v3"); e("v_xor_b32 v42, v2, v41"); e("v_xor_b32 v43, 8, v42")
    e("v_lshlrev_b32 v42, 4, v42"); e("v_lshlrev_b32 v43, 4, v43")
    for i in range(4):
        src = 42 if i % 2 == 0 else 43
        k = 4 * i * 1280 - 1024 * i
        if k: e(f"v_add_u32 v{6+i}, {k}, v40"); e(f"v_add_u32 v{6+i}, v{6+i}, v{src}")
        else: e(f"v_add_u32 v{6+i}, v40, v{src}")
    e("s_waitcnt lgkmcnt(0)")
    g.stamp()
    e("s_mul_i32 s43, s46, 48"); e("s_lshl_b32 s44, s47, 3"); e("s_add_u32 s43, s43, s44"); e("s_lshl_b32 s43, s43, 7")
    e("s_lshl_b32 s44, s45, 5"); e("s_add_u32 s43, s43, s44"); e("s_lshl_b32 s43, s43, 10")
    e("s_add_u32 s16, s10, s43"); e("s_addc_u32 s17, s11, 0"); e("s_and_b32 s17, s17, 0xffff")
    e(f"s_mov_b32 s18, {8*131072 - 0}"); e("s_mov_b32 s19, 0x20000")
    e("s_mul_i32 s43, s45, 1310720"); e("s_lshl_b32 s44, s48, 8"); e("s_add_u32 s43, s43, s44")
    e("s_add_u32 s20, s4, s43"); e("s_addc_u32 s21, s5, 0"); e("s_and_b32 s21, s21, 0xffff")
    e("s_sub_u32 s22, 5242880, s43"); e("s_mov_b32 s23, 0x20000")
    OF = OPT.get("o_nt", " nt"); WF = OPT.get("wo_nt", " nt")
    def items(sg):
        slot = (sg % NR) * SL
        pre = [f"s_add_u32 s43, s49, {sg}", "s_and_b32 s43, s43, 15", "s_lshl_b32 s50, s43, 11", "s_mul_i32 s51, s43, 81920"]
        its = []
        for a_ in range(2):
            for b_ in range(2):
                its.append(dict(key=f"K{sg}.{a_*2+b_}", gate=f"free{sg}", tag=f"K{sg}", m0=(39, slot), so=None, due=None, pre=pre if (a_ == 0 and b_ == 0) else [],
                                instr=f"buffer_load_dwordx4 v{4+a_}, s[16:19], s50 offen offset:{a_*2048+b_*1024}{OF} lds"))
        for i in range(4):
            its.append(dict(key=f"K{sg}.{4+i}", gate=f"free{sg}", tag=f"K{sg}", m0=(39, slot + 16384), so=None, due=None, pre=[],
                            instr=f"buffer_load_dwordx4 v{6+i}, s[20:23], s51 offen offset:{i*1024}{WF} lds"))
        return its
    def emit(it):
        g.inbg = True
        for p in it["pre"]: g.raw(p)
        g.inbg = False
        g.emit_item(it)
    NPRE = int(OPT.get("k2pre", 2))
    for sg in range(NPRE):
        for it in items(sg): emit(it)
    g.stamp()
    for mi in range(4):
        e(f"s_xor_b32 s43, s45, {mi}"); e("s_lshl_b32 s44, s37, 2"); e("s_add_u32 s43, s43, s44"); e("s_lshl_b32 s43, s43, 11")
        e(f"v_add_u32 v{14+mi}, s43, v12")
    e("v_lshrrev_b32 v42, 2, v2"); e("v_and_b32 v43, 3, v2")
    e("v_lshlrev_b32 v44, 2, v3"); e("v_add_u32 v44, v44, v42")
    e("v_lshlrev_b32 v40, 8, v44"); e("v_and_b32 v45, 7, v44")
    e("s_lshl_b32 s43, s38, 2"); e("v_xor_b32 v45, s43, v45"); e("v_lshlrev_b32 v45, 5, v45")
    e("v_lshlrev_b32 v46, 3, v43")
    e("v_add3_u32 v18, v40, v45, v46")
    e("v_add_u32 v18, 16384, v18")
    e("s_mul_i32 s52x, s46, 30".replace("s52x", "s44")); e("s_add_u32 s44, s44, s15")
    e("s_lshl_b32 s43, s44, 18")
    e(f"s_add_u32 s43, s43, {PART_OFF}")
    e("s_add_u32 s24, s10, s43"); e("s_addc_u32 s25, s11, 0"); e("s_and_b32 s25, s25, 0xffff")
    e("s_mov_b32 s26, 262144"); e("s_mov_b32 s27, 0x20000")
    e("s_lshl_b32 s42, s44, 2")
    e("s_mov_b32 s28, s8"); e("s_and_b32 s29, s9, 0xffff"); e("s_mov_b32 s30, 256"); e("s_mov_b32 s31, 0x20000")
    e("s_mov_b32 s32, s6"); e("s_and_b32 s33, s7, 0xffff"); e("s_mov_b32 s34, 1966080"); e("s_mov_b32 s35, 0x20000")
    ACC = 64
    SET = [128, 160]
    def reads(sg, b_, st):
        slot = (sg % NR) * SL; base = SET[st]; L_ = []
        L_.append(f"v_add_u32 v20, {slot + b_*8192}, v18")
        for t in range(1, 4): L_.append(f"v_xor_b32 v{20+t}, {t<<5}, v20")
        for mi in range(4): L_.append(f"v_add_u32 v{24+mi}, {slot + b_*1024}, v{14+mi}")
        for t in range(4):
            L_.append(f"ds_read_b64_tr_b16 {vr(base+t*4,2)}, v{20+t}")
            L_.append(f"ds_read_b64_tr_b16 {vr(base+t*4+2,2)}, v{20+t} offset:4096")
        for mi in range(4): L_.append(f"ds_read_b128 {vr(base+16+mi*4)}, v{24+mi}")
        return L_
    def mfmas(st, first):
        base = SET[st]; L_ = []
        for t in range(4):
            for mi in range(4):
                d = ACC + (mi * 4 + t) * 4
                cc = "0" if first else vr(d)
                L_.append(f"v_mfma_f32_16x16x32_bf16 {vr(d)}, {vr(base+t*4)}, {vr(base+16+mi*4)}, {cc}")
        return L_
    def weave_dma(prim, sec, its):
        n = len(prim); m = len(sec); k = 0; q = 0
        for i, p in enumerate(prim):
            g.raw(p)
            tgt = min(m, int(round((i + 1) * m / (n * 0.7))))
            while k < tgt: g.raw(sec[k]); k += 1
            tq = int((i + 1) * len(its) / n)
            while q < tq: emit(its[q]); q += 1
        while k < m: g.raw(sec[k]); k += 1
        while q < len(its): emit(its[q]); q += 1
    g.wait_vm("K0")
    e("s_barrier")
    g.stamp()
    for x in reads(0, 0, 0): e(x)
    e("s_waitcnt lgkmcnt(0)")
    pend = []
    for sg in range(NPRE, 4): pend += items(sg)
    for sg in range(16):
        if sg in (4, 8, 12): g.stamp()
        nh = 4 if len(pend) <= 4 else (len(pend) + 1) // 2
        h1 = pend[:nh]; pend = pend[nh:]
        weave_dma(mfmas(0, sg == 0), reads(sg, 1, 1), h1)
        e("s_waitcnt lgkmcnt(0)")
        if sg < 15:
            if sg > 0 or NPRE >= 3:
                for it in pend: emit(it)
                pend = []
            g.wait_vm(f"K{sg+1}")
            e("s_barrier")
            nxt = items(sg + 4) if sg + 4 < 16 else []
            weave_dma(mfmas(1, False), reads(sg + 1, 0, 0), pend + nxt[:4])
            pend = nxt[4:]
            e("s_waitcnt lgkmcnt(0)")
        else:
            for x in mfmas(1, False): e(x)
    g.stamp()
    e("s_lshl_b32 s43, s45, 2"); e("s_add_u32 s43, s43, s36"); e("s_lshl_b32 s43, s43, 14")
    e("s_nop 7")
    for mi in range(1, 4):
        e(f"s_xor_b32 s44, s45, {mi}"); e("s_lshl_b32 s44, s44, 12"); e("s_add_u32 s44, s44, s43")
        for t in range(4):
            d = ACC + (mi * 4 + t) * 4
            g.vmem(f"buffer_store_dwordx4 {vr(d)}, v12, s[24:27], s44 offen offset:{t*1024}{OPT.get('pst',' sc1')}", "P")
    g.wait_vm_all()
    e("s_barrier")
    g.stamp()
    e("s_cmp_lg_u32 s36, 0")
    g.raw("s_cbranch_scc1 L_k2_join")
    e("v_mov_b32 v40, s42"); e("v_mov_b32 v41, 1")
    e("s_mov_b64 exec, 1")
    e("buffer_atomic_add v41, v40, s[28:31], 0 offen sc1")
    e("s_mov_b32 s44, 0")
    g.raw("L_k2_poll:")
    e("buffer_load_dword v42, v40, s[28:31], 0 offen sc1")
    e("s_waitcnt vmcnt(0)")
    e("v_readfirstlane_b32 s43, v42")
    e("s_add_u32 s44, s44, 1")
    e("s_cmp_ge_u32 s43, 4")
    g.raw("s_cbranch_scc1 L_k2_polled")
    e("s_cmp_lt_u32 s44, 0x40000")
    g.raw("s_cbranch_scc0 L_k2_polled")
    e("s_sleep 2")
    g.raw("s_branch L_k2_poll")
    g.raw("L_k2_polled:")
    e("s_mov_b64 exec, -1")
    g.raw("L_k2_join:")
    e("s_barrier")
    g.stamp()
    for dd in range(1, 4):
        e(f"s_xor_b32 s43, s45, {dd}"); e("s_lshl_b32 s43, s43, 2"); e("s_add_u32 s43, s43, s36"); e("s_lshl_b32 s43, s43, 14")
        e("s_lshl_b32 s44, s45, 12"); e("s_add_u32 s43, s43, s44")
        for t in range(4):
            g.vmem(f"buffer_load_dwordx4 {vr(128+((dd-1)*4+t)*4)}, v12, s[24:27], s43 offen offset:{t*1024}{OPT.get('pld',' sc1')}", "R")
    e("s_lshl_b32 s43, s47, 7"); e("s_lshl_b32 s44, s37, 6"); e("s_add_u32 s43, s43, s44"); e("s_lshl_b32 s44, s45, 4"); e("s_add_u32 s43, s43, s44")
    e("v_add_u32 v40, s43, v2"); e("v_mul_u32_u24 v40, 2560, v40")
    e("s_mul_i32 s43, s46, 1280"); e("s_lshl_b32 s44, s48, 8"); e("s_add_u32 s43, s43, s44"); e("s_lshl_b32 s44, s38, 7"); e("s_add_u32 s43, s43, s44")
    e("v_lshlrev_b32 v41, 3, v3")
    e("v_add3_u32 v40, v40, v41, s43")
    g.wait_vm_all()
    for t in range(4):
        d = ACC + t * 4
        for dd in range(3):
            s_ = 128 + (dd * 4 + t) * 4
            for x in range(0, 4, 2):
                e(f"v_pk_add_f32 v[{d+x}:{d+x+1}], v[{d+x}:{d+x+1}], v[{s_+x}:{s_+x+1}]")
    for t in range(4):
        d = ACC + t * 4
        e(f"v_cvt_pk_bf16_f32 v{44+2*t}, v{d}, v{d+1}")
        e(f"v_cvt_pk_bf16_f32 v{45+2*t}, v{d+2}, v{d+3}")
    for t in range(4):
        e(f"buffer_store_dwordx2 v[{44+2*t}:{45+2*t}], v40, s[32:35], 0 offen offset:{t*32}")
    e("s_waitcnt vmcnt(0)")
    g.stamp()
    e("s_mov_b32 s12, s10"); e("s_mov_b32 s13, s11")
    g.stamp_out(12, 17*1024*1024)
    g.raw("L_k2_end:")
    g.raw("s_endpgm")
    return ".text\n" + kernel_begin(name) + g.text()

def main(fname):
    src = open("concat_heads__mha_block_cached__mha_block_cached__near_ridge.s.ref").read()
    hdr = [l for l in src.splitlines() if l.startswith(";") and "@launch" not in l and "Override" not in l and "grid=ceil" not in l]
    k1, k2 = "attn_kernel", "oproj_kernel"
    out = "\n".join(hdr) + "\n"
    ll = [f"; @launch kernel={k1} grid=(256,1,1) block=(256,1,1) lds=163840",
                   f"; @launch kernel={k2} grid=(240,1,1) block=(256,1,1) lds=131072"]
    if OPT.get("only") == "k2": ll = ll[1:]
    if OPT.get("only") == "k1": ll = ll[:1]
    out += header(ll)
    out += build_k1(k1) + gen_k2(k2)
    out += kernel_desc(k1, vgpr=512, sgpr=102, accum=256)
    out += kernel_desc(k2, vgpr=256, sgpr=102, accum=256)
    open(fname, "w").write(out)

if __name__ == "__main__":
    for a in sys.argv[2:]:
        if a == "stamp": STAMP = True
        else:
            k, v = a.split("=", 1)
            OPT[k] = v.replace("_", " ")
    main(sys.argv[1] if len(sys.argv) > 1 else "v1.s")
```

```python
import sys
from gen_common import *

STAMP = False
OPT = {}
NT = " nt"

def vr(b, n=4): return f"v[{b}:{b+n-1}]"
def ar(b, n=4): return f"a[{b}:{b+n-1}]"

def cost(s):
    op = s.split()[0]
    if op.startswith("v_mfma"): return 16
    if op in ("v_exp_f32", "v_rcp_f32"): return 8
    if op.startswith("v_"): return 4
    if op == "ds_write_b128": return 24
    if op == "ds_write_b64": return 10
    if op.startswith("ds_"): return 5
    if op == "s_barrier": return 40
    if op == "s_waitcnt": return 40 if "lgkm" in s else 4
    if op == "s_nop": return 4 * (int(s.split()[1]) + 1)
    if op.startswith("buffer_"): return 16
    if op.startswith(";") or op.endswith(":"): return 0
    return 4

class G:
    def __init__(self, plan=None):
        self.L = []; self.vm = []; self.nst = 0
        self.pos = 0
        self.events = {}
        self.bg = []
        self.plan = plan
        self.m0 = None; self.so = {}
        self.inbg = False
        self.issued = {}
        self.needs = []
    def landed_est(self):
        T = float(OPT.get("T", 1150))
        best = -1e9
        for (x, p) in self.needs:
            best = max(best, x + 1 + (self.pos - p) / T)
        return best
    def raw(self, s):
        self.L.append(s); self.pos += cost(s)
    def e(self, s):
        self.raw(s)
        if not self.inbg: self.pump()
    def c(self, s): self.L.append("; " + s)
    def mark(self, name):
        self.events[name] = self.pos
        self.pump()
    def vmem(self, s, tag):
        self.raw(s); self.vm.append(tag)
    def add_bg(self, items): self.bg += items
    def emit_item(self, it):
        self.inbg = True
        if it.get("so") is not None:
            sreg, val = it["so"]
            if self.so.get(sreg) != val:
                self.raw(f"s_mov_b32 s{sreg}, {val}"); self.so[sreg] = val
        if it.get("m0") is not None and self.m0 != it["m0"]:
            base, off = it["m0"]
            self.raw(f"s_add_u32 m0, s{base}, {off}"); self.raw("s_nop 0"); self.m0 = it["m0"]
        self.vmem(it["instr"], it["tag"])
        self.issued[it["key"]] = self.pos
        self.inbg = False
    def pump(self):
        while self.bg:
            it = self.bg[0]
            if it["gate"] is not None and it["gate"] not in self.events: break
            if "stage" in it and OPT.get("sched", "flow") == "flow":
                m, ii = it["stage"]
                if m + (ii + 1) / 4.0 > self.landed_est() + float(OPT.get("D", 3.0)): break
                self.bg.pop(0); self.emit_item(it); continue
            due = it.get("due")
            if due is None:
                due = self.plan.get(it["key"]) if self.plan is not None else None
            if due is None:
                if self.plan is not None: break
                due = 0
            if self.pos < due: break
            self.bg.pop(0); self.emit_item(it)
    def flush(self, tag):
        idx = max([i for i, it in enumerate(self.bg) if it["tag"] == tag], default=None)
        if idx is None: return
        for it in self.bg[:idx + 1]:
            assert it["gate"] is None or it["gate"] in self.events, (it["key"], it["gate"])
            self.emit_item(it)
        self.bg = self.bg[idx + 1:]
    def wait_vm(self, tag):
        self.flush(tag)
        self.events.setdefault("need_" + tag, self.pos)
        if tag[0] in "SR" and tag[1:].isdigit(): self.needs.append((int(tag[1:]), self.pos))
        idx = max([i for i, t in enumerate(self.vm) if t == tag], default=None)
        if idx is None: return
        n = len(self.vm) - 1 - idx
        assert n <= 63, n
        self.raw(f"s_waitcnt vmcnt({n})")
        self.vm = self.vm[idx + 1:]
    def wait_vm_all(self):
        assert not self.bg
        self.raw("s_waitcnt vmcnt(0)"); self.vm = []
    def weave(self, prim, sec, start=0, frac=None):
        if frac is None: frac = float(OPT.get('frac', 0.55))
        n = len(prim); m = len(sec)
        span = max(1, int((n - start) * frac))
        k = 0
        for i, p in enumerate(prim):
            self.e(p)
            if i >= start:
                tgt = min(m, int(round((i - start + 1) * m / span)))
                while k < tgt:
                    self.e(sec[k]); k += 1
        while k < m:
            self.e(sec[k]); k += 1
    def stamp(self):
        if not STAMP or self.nst >= 22: return
        k = self.nst; self.nst += 1
        self.raw(f"s_memtime s[{52+2*k}:{53+2*k}]")
    def stamp_out(self, wsreg, off):
        if not STAMP: return
        e = self.raw
        e("s_waitcnt lgkmcnt(0) vmcnt(0)")
        e("s_memrealtime s[50:51]")
        e("s_waitcnt lgkmcnt(0)")
        e(f"s_add_u32 s16, s{wsreg}, {off}"); e(f"s_addc_u32 s17, s{wsreg+1}, 0"); e("s_and_b32 s17, s17, 0xffff")
        e("s_mov_b32 s18, 1048576"); e("s_mov_b32 s19, 0x20000")
        e("s_lshl_b32 s3, s2, 10"); e("s_lshl_b32 s43, s36, 8"); e("s_add_u32 s3, s3, s43")
        e("v_mov_b32 v40, s3")
        for k in range(self.nst):
            e(f"v_mov_b32 v41, s{52+2*k}")
            e(f"buffer_store_dword v41, v40, s[16:19], 0 offen offset:{4*k}")
            e("s_nop 0")
        e("s_getreg_b32 s43, hwreg(HW_REG_XCC_ID)")
        e("v_mov_b32 v41, s43"); e("buffer_store_dword v41, v40, s[16:19], 0 offen offset:244")
        e("v_mov_b32 v41, s50"); e("buffer_store_dword v41, v40, s[16:19], 0 offen offset:248")
        e("s_nop 0")
        e("v_mov_b32 v41, s100"); e("buffer_store_dword v41, v40, s[16:19], 0 offen offset:252")
        e("s_waitcnt vmcnt(0)")
    def text(self): return "\n".join(self.L) + "\n"

SLOT = 16384
NSLOT = 7
E = NSLOT * SLOT
QB = [72 * 1024, 32 * 1024, 112 * 1024]
NREG = 5

def gen_k1(name, plan=None):
    g = G(plan); e = g.e
    SO_Q, SO_K = 44, 45
    e("s_cmp_ge_u32 s2, 256")
    e("s_cbranch_scc1 L_k1_end")
    if STAMP: e("s_memrealtime s[100:101]")
    g.stamp()
    e("s_and_b32 s14, s2, 7")
    e("s_lshr_b32 s46, s14, 2")
    e("s_mul_i32 s3, s46, 40")
    e("s_load_dwordx8 s[4:11], s[0:1], s3")
    e("s_load_dwordx2 s[12:13], s[0:1], 96")
    e("v_lshrrev_b32 v2, 6, v0")
    e("v_and_b32 v1, 63, v0")
    e("s_lshr_b32 s15, s2, 3")
    e("v_readfirstlane_b32 s36, v2")
    e("v_and_b32 v2, 15, v1")
    e("v_lshrrev_b32 v3, 4, v1")
    e("s_and_b32 s47, s14, 3")
    e("s_lshl_b32 s47, s47, 3")
    e("s_and_b32 s48, s15, 7")
    e("s_add_u32 s47, s47, s48")
    e("s_lshr_b32 s48, s15, 3")
    e("s_lshl_b32 s39, s36, 12")
    e("s_lshr_b32 s49, s15, 4"); e("s_lshl_b32 s49, s49, 3"); e("s_and_b32 s43, s15, 7"); e("s_add_u32 s49, s49, s43")
    e("s_lshl_b32 s49, s49, 2"); e("s_add_u32 s49, s49, s36")
    e("v_mul_u32_u24 v41, 43, v1"); e("v_lshrrev_b32 v41, 9, v41")
    e("v_mul_u32_u24 v42, 12, v41"); e("v_sub_u32 v42, v1, v42")
    e("v_mul_u32_u24 v42, 1280, v42"); e("v_lshlrev_b32 v41, 7, v41"); e("v_add_u32 v40, v41, v42")
    e("v_lshlrev_b32 v41, 19, v3"); e("v_lshlrev_b32 v42, 7, v2"); e("v_add_u32 v42, v41, v42")
    e("v_lshlrev_b32 v46, 8, v3")
    e("v_add_u32 v46, s39, v46")
    for i in range(4):
        e(f"v_add_u32 v47, {4*i}, v3")
        e("v_xor_b32 v47, v2, v47")
        e("v_lshlrev_b32 v47, 4, v47")
        e(f"v_add_u32 v{4+i}, v46, v47")
    e("s_mul_i32 s42, s36, 6144")
    e("v_lshrrev_b32 v48, 3, v1")
    e("s_mul_i32 s43, s36, 48")
    e("v_add_u32 v48, s43, v48")
    e("v_mul_u32_u24 v48, 1280, v48")
    e("v_and_b32 v49, 7, v1")
    e("v_xor_b32 v50, v49, v3")
    e("v_xor_b32 v51, 4, v50")
    e("v_lshlrev_b32 v50, 4, v50")
    e("v_lshlrev_b32 v51, 4, v51")
    for i in range(6):
        src = 50 if i % 2 == 0 else 51
        k = 8 * i * 1280 - (i & 3) * 1024
        if k: e(f"v_add_u32 v{164+i}, {k}, v48"); e(f"v_add_u32 v{164+i}, v{164+i}, v{src}")
        else: e(f"v_add_u32 v{164+i}, v48, v{src}")
    e("s_lshl_b32 s43, s36, 4")
    e("v_add_u32 v48, s43, v3")
    e("v_lshlrev_b32 v48, 13, v48")
    e("v_lshlrev_b32 v49, 1, v3")
    e("v_xor_b32 v50, v2, v49")
    e("v_xor_b32 v51, 8, v50")
    e("v_lshlrev_b32 v50, 4, v50")
    e("v_lshlrev_b32 v51, 4, v51")
    for i in range(4):
        src = 50 if ((i >> 1) & 1) == 0 else 51
        k = 4 * i * 8192 - 1024 * i
        if k: e(f"v_add_u32 v{160+i}, {k}, v48"); e(f"v_add_u32 v{160+i}, v{160+i}, v{src}")
        else: e(f"v_add_u32 v{160+i}, v48, v{src}")
    e("s_mul_i32 s50, s49, 15360")
    e("s_lshl_b32 s51, s49, 13")
    e("s_and_b32 s3, s14, 3"); e("s_lshl_b32 s3, s3, 11")
    e("s_lshl_b32 s43, s48, 6"); e("s_add_u32 s43, s43, s47"); e("s_lshl_b32 s43, s43, 17")
    e("s_waitcnt lgkmcnt(0)")
    g.stamp()
    TF = OPT.get("tf", " nt")
    e("s_mov_b32 s88, s4"); e("s_and_b32 s89, s5, 0xffff"); e("s_mov_b32 s90, 983040"); e("s_mov_b32 s91, 0x20000")
    e("s_add_u32 s92, s10, s3"); e("s_addc_u32 s93, s11, 0"); e("s_and_b32 s93, s93, 0xffff")
    e("s_sub_u32 s94, 5242880, s3"); e("s_mov_b32 s95, 0x20000")
    def touches(V):
        if OPT.get("touch", "1") != "1" or V != "A": return
        def tx(s0, nl):
            m = (1 << nl) - 1
            e(f"s_mov_b32 exec_lo, 0x{m & 0xffffffff:x}"); e(f"s_mov_b32 exec_hi, 0x{m >> 32:x}")
            e(f"s_add_u32 s43, s50, {s0 * 128}")
            g.vmem(f"buffer_load_dword v60, v40, s[88:91], s43 offen{TF}", "T")
        def tw(s0, nl):
            m = (1 << nl) - 1
            e(f"s_mov_b32 exec_lo, 0x{m & 0xffffffff:x}"); e(f"s_mov_b32 exec_hi, 0x{m >> 32:x}")
            e(f"s_add_u32 s43, s51, {s0 * 524288}")
            g.vmem(f"buffer_load_dword v61, v42, s[92:95], s43 offen{TF}", "T")
        tx(0, 60); tw(0, 64); tw(4, 64); tx(5, 60); tw(8, 32)
        e("s_mov_b64 exec, -1")
    e("s_add_u32 s20, s6, s43"); e("s_addc_u32 s21, s7, 0"); e("s_and_b32 s21, s21, 0xffff")
    e("s_sub_u32 s22, 33554432, s43"); e("s_mov_b32 s23, 0x20000")

    def kv_items(n):
        r, jj = n // 16, n % 16
        isK = jj < 8; j = jj % 8
        slot = (n % NSLOT) * SLOT
        its = []
        for ii in range(4):
            if isK: ins = f"buffer_load_dwordx4 v{4+ii}, s[20:23], s{SO_K} offen offset:{ii*1024}{NT} lds"
            else: ins = f"buffer_load_dwordx4 v{8+(ii&1)}, s[24:27], s{SO_K} offen offset:{ii*1024}{NT} lds"
            its.append(dict(key=f"S{n}.{ii}", gate=f"free_S{n}", tag=f"S{n}", m0=(39, slot), so=(SO_K, r*4194304 + j*16384), instr=ins))
        return its
    def kreg_items(n):
        its = []
        for ii in range(4):
            ins = f"buffer_load_dwordx4 {vr(176+(n-2)*16+ii*4)}, v{4+ii}, s[20:23], s{SO_K} offen offset:{ii*1024}{NT}"
            its.append(dict(key=f"S{n}.{ii}", gate=None, tag=f"R{n}", m0=None, so=(SO_K, n*16384), instr=ins))
        return its
    QF = OPT.get("qf", " nt")
    def q_items(i, V=""):
        buf = QB[i % 3]; tag = f"Q{i}"; its = []
        for ii in range(6):
            its.append(dict(key=f"{V}Q{i}.{ii}", gate=f"{V}free_Q{i}", tag=tag, m0=(42, buf + (4096 if ii >= 4 else 0)), so=(SO_Q, i*128),
                            instr=f"buffer_load_dwordx4 v{164+ii}, s[16:19], s{SO_Q} offen offset:{(ii&3)*1024}{QF} lds"))
        for ii in range(4):
            its.append(dict(key=f"{V}Q{i}.{6+ii}", gate=f"{V}free_Q{i}", tag=tag, m0=(39, buf + 24576), so=(SO_Q, i*524288),
                            instr=f"buffer_load_dwordx4 v{160+ii}, s[28:31], s{SO_Q} offen offset:{ii*1024}{QF} lds"))
        return its
    def now(its):
        for it in its: g.emit_item(it)

    e("s_mul_i32 s43, s48, 245760")
    e("s_add_u32 s16, s4, s43"); e("s_addc_u32 s17, s5, 0"); e("s_and_b32 s17, s17, 0xffff")
    e("s_mov_b32 s18, 245760"); e("s_mov_b32 s19, 0x20000")
    e("s_lshl_b32 s43, s47, 8")
    e("s_add_u32 s28, s10, s43"); e("s_addc_u32 s29, s11, 0"); e("s_and_b32 s29, s29, 0xffff")
    e("s_sub_u32 s30, 5242880, s43"); e("s_mov_b32 s31, 0x20000")
    def setup_rest():
        e("s_and_b32 s37, s36, 1")
        e("s_lshr_b32 s38, s36, 1")
        e("s_mov_b32 s40, 0x3e0293ee"); e("s_mov_b32 s41, 0x3e0293ee")
        e("s_lshl_b32 s43, s48, 6"); e("s_add_u32 s43, s43, s47"); e("s_lshl_b32 s43, s43, 17")
        e("s_add_u32 s24, s8, s43"); e("s_addc_u32 s25, s9, 0"); e("s_and_b32 s25, s25, 0xffff")
        e("s_sub_u32 s26, 33554432, s43"); e("s_mov_b32 s27, 0x20000")
        e("s_mul_i32 s43, s46, 6291456")
        e("s_add_u32 s32, s12, s43"); e("s_addc_u32 s33, s13, 0"); e("s_and_b32 s33, s33, 0xffff")
        e("s_mov_b32 s34, 6291456"); e("s_mov_b32 s35, 0x20000")
        e("v_lshlrev_b32 v46, 8, v3"); e("v_add_u32 v46, s39, v46")
        for p in range(2):
            e(f"v_add_u32 v41, {4*p}, v3")
            e("v_lshlrev_b32 v41, 1, v41")
            e("v_xor_b32 v41, v2, v41")
            e("v_lshlrev_b32 v41, 4, v41")
            e(f"v_add_u32 v{8+p}, v46, v41")
        e("s_lshl_b32 s43, s38, 5")
        e("v_add_u32 v40, s43, v2"); e("v_lshlrev_b32 v40, 8, v40")
        e("v_xor_b32 v41, v3, v2"); e("v_lshlrev_b32 v41, 4, v41")
        e("v_add_u32 v10, v40, v41")
        e("v_lshrrev_b32 v42, 2, v2"); e("v_and_b32 v43, 3, v2")
        e("v_lshlrev_b32 v44, 2, v3"); e("v_add_u32 v44, v44, v42")
        e("v_add_u32 v40, s43, v44"); e("v_lshlrev_b32 v40, 8, v40")
        e("v_and_b32 v45, 7, v44")
        e("s_lshl_b32 s51, s38, 2")
        e("v_xor_b32 v45, s51, v45"); e("v_lshlrev_b32 v45, 5, v45")
        e("v_lshlrev_b32 v46, 3, v43")
        e("v_add3_u32 v11, v40, v45, v46")
        e("v_lshlrev_b32 v12, 4, v1")
        e("s_mul_i32 s43, s37, 6144")
        e("v_lshrrev_b32 v40, 3, v2"); e("v_lshlrev_b32 v40, 10, v40")
        e("v_and_b32 v41, 7, v2"); e("v_lshlrev_b32 v41, 7, v41")
        e("v_lshrrev_b32 v47, 1, v2"); e("v_and_b32 v47, 7, v47"); e("v_xor_b32 v47, v3, v47"); e("v_lshlrev_b32 v47, 4, v47")
        e("v_add3_u32 v170, v40, v41, v47")
        e("v_add_u32 v170, s43, v170")
        e("v_lshlrev_b32 v40, 3, v3"); e("v_add_u32 v40, v40, v42"); e("v_lshlrev_b32 v40, 8, v40")
        e("v_and_b32 v41, 1, v3"); e("v_lshlrev_b32 v41, 2, v41"); e("v_add_u32 v41, v41, v42")
        e("v_xor_b32 v41, s51, v41"); e("v_lshlrev_b32 v41, 5, v41")
        e("v_add3_u32 v171, v40, v41, v46")
        e("v_add_u32 v171, 24576, v171")
        e("v_mov_b32 v40, 0x3f803f80")
        for i in range(4): e(f"v_accvgpr_write_b32 a{176+i}, v40")

    QSET = [96, 136]
    def q_reads(i, ks, st):
        L_ = []
        buf = QB[i % 3]; base = QSET[st]
        L_.append(f"v_add_u32 v13, {buf}, v170")
        if ks: L_.append("v_xor_b32 v13, 64, v13")
        L_.append(f"v_add_u32 v14, {buf + ks*8192}, v171")
        for t in range(1, 4): L_.append(f"v_xor_b32 v{14+t}, {t<<5}, v14")
        for t in range(4):
            L_.append(f"ds_read_b64_tr_b16 {ar(base+t*4,2)}, v{14+t}")
            L_.append(f"ds_read_b64_tr_b16 {ar(base+t*4+2,2)}, v{14+t} offset:1024")
        for uu in range(6):
            imm = (uu // 3) * 12288 + (uu % 3) * 2048
            L_.append(f"ds_read_b128 {ar(base+16+uu*4)}, v13 offset:{imm}")
        return L_
    def q_mfma(st, first):
        L_ = []
        base = QSET[st]
        for t in range(4):
            for uu in range(6):
                d = 64 + (t * 6 + uu) * 4
                cc = "0" if first else vr(d)
                L_.append(f"v_mfma_f32_16x16x32_bf16 {vr(d)}, {ar(base+t*4)}, {ar(base+16+uu*4)}, {cc}")

        return L_
    def head(V):
        g.m0 = None; g.so = {}
        g.mark("free_S0"); g.mark("free_S1")
        for i in range(3): g.mark(f"{V}free_Q{i}")
        touches(V)
        kits = kv_items(0) + kv_items(1)
        for n in range(2, 2 + NREG): kits += kreg_items(n)
        for k, it in enumerate(kits): it["gate"] = f"{V}free_Q9"; it["key"] = f"{V}KIT{k}"
        if OPT.get("nok"): kits = []
        now(q_items(0, V))
        g.stamp()
        its = q_items(1, V) + q_items(2, V)
        for it in its: it["due"] = 0
        npre = int(OPT.get("npre", 10))
        now(its[:npre]); its = its[npre:]
        setup_rest()
        bg = its
        for i in range(3, 10): bg += q_items(i, V)
        bg += kits
        g.add_bg(bg)
        g.stamp()
        g.wait_vm("Q0")
        e("s_barrier")
        g.stamp()
        for x in q_reads(0, 0, 0): e(x)
        e("s_waitcnt lgkmcnt(0)")
        for i in range(10):
            dbg = OPT.get("qdbg") and i in [int(x) for x in OPT.get("qdbg").split(",")]
            if dbg or OPT.get("qtop"): g.stamp()
            g.weave(q_mfma(0, i == 0), q_reads(i, 1, 1))
            if dbg: g.stamp()
            e("s_waitcnt lgkmcnt(0)")
            if i < 9:
                if dbg: g.stamp()
                g.wait_vm(f"Q{i+1}")
                if dbg: g.stamp()
                e("s_barrier")
                if dbg: g.stamp()
                g.mark(f"{V}free_Q{i+3}")
                g.weave(q_mfma(1, False), q_reads(i + 1, 0, 0))
                if dbg: g.stamp()
                e("s_waitcnt lgkmcnt(0)")
            else:
                for x in q_mfma(1, False): e(x)
        g.stamp()
        g.flush(f"R{1+NREG}")
        assert not g.bg
        if OPT.get("stopq"):
            g.wait_vm_all()
            g.raw("s_branch L_k1_fin")
    mode = OPT.get("heads", "AB")
    nst0 = g.nst
    if mode == "AB":
        e("s_and_b32 s43, s48, 1")
        e("s_cmp_eq_u32 s43, 1")
        g.raw("s_cbranch_scc1 L_headB")
        vm0 = list(g.vm)
        head("A")
        g.raw("s_branch L_merge")
        vmA = list(g.vm); posA = g.pos
        g.raw("L_headB:")
        g.vm = list(vm0); g.nst = nst0
        head("B")
        assert g.vm == vmA, (g.vm, vmA)
        g.raw("L_merge:")
    else:
        head(mode)
    g.m0 = None; g.so = {}
    e("s_barrier")
    g.stamp()
    e("s_mul_i32 s43, s37, 48")
    e("v_add_u32 v40, s43, v2"); e("v_lshlrev_b32 v40, 8, v40")
    e("s_lshl_b32 s43, s38, 3")
    e("v_lshrrev_b32 v41, 1, v3"); e("v_add_u32 v41, s43, v41"); e("v_xor_b32 v41, v41, v2"); e("v_lshlrev_b32 v41, 4, v41")
    e("v_and_b32 v42, 1, v3"); e("v_lshlrev_b32 v42, 3, v42")
    e("v_add3_u32 v40, v40, v41, v42")
    e(f"v_add_u32 v40, {E}, v40")
    for t in range(1, 4): e(f"v_xor_b32 v{40+t}, {t<<5}, v40")
    k = 0
    for t in range(4):
        for uu in range(6):
            d = 64 + (t * 6 + uu) * 4
            b = 44 + 2 * (k % 4); k += 1
            e(f"v_cvt_pk_bf16_f32 v{b}, v{d}, v{d+1}")
            e(f"v_cvt_pk_bf16_f32 v{b+1}, v{d+2}, v{d+3}")
            imm = (uu // 3) * 24576 + (uu % 3) * 4096
            e(f"ds_write_b64 v{40+t}, v[{b}:{b+1}] offset:{imm}")
    e("s_waitcnt lgkmcnt(0)")
    e("s_barrier")
    e("s_mul_i32 s43, s37, 48")
    e("v_add_u32 v40, s43, v2"); e("v_lshlrev_b32 v40, 8, v40")
    e("v_xor_b32 v41, v3, v2"); e("v_lshlrev_b32 v41, 4, v41")
    e("v_add_u32 v40, v40, v41")
    e(f"v_add_u32 v40, {E}, v40")
    for s in range(1, 4): e(f"v_xor_b32 v{40+s}, {s<<6}, v40")
    cnt = 0
    for r in range(2):
        for u in range(3):
            for s in range(4):
                e(f"ds_read_b128 {ar(((r*3+u)*4+s)*4)}, v{40+s} offset:{r*24576+u*4096}")
                cnt += 1
                if cnt % 12 == 0: e("s_waitcnt lgkmcnt(0)")

    bg = []
    for n in range(2 + NREG, 32):
        its = kv_items(n)
        for ii, it in enumerate(its): it["stage"] = (n, ii)
        bg += its
    g.add_bg(bg)

    KSET = [96, 112]
    def k_reads(n, tau, st):
        L_ = []
        slot = (n % NSLOT) * SLOT
        L_.append(f"v_add_u32 v13, {slot + tau*4096}, v10")
        for s in range(1, 4): L_.append(f"v_xor_b32 v{13+s}, {s<<6}, v13")
        for s in range(4):
            L_.append(f"ds_read_b128 {ar(KSET[st]+s*4)}, v{13+s}")
        return L_
    def s_mfma(r, j, tau, st):
        L_ = []
        for s in range(4):
            for u in range(3):
                d = 64 + (j * 3 + u) * 8 + 4 * tau
                cc = "0" if s == 0 else vr(d)
                L_.append(f"v_mfma_f32_16x16x32_bf16 {vr(d)}, {ar(KSET[st]+s*4)}, {ar(((r*3+u)*4+s)*4)}, {cc}")
        return L_
    def v_reads(n, hh, st):
        L_ = []
        slot = (n % NSLOT) * SLOT
        L_.append(f"v_add_u32 v13, {slot}, v11")
        if hh: L_.append(f"v_xor_b32 v13, {4<<5}, v13")
        for t in range(1, 4): L_.append(f"v_xor_b32 v{13+t}, {t<<5}, v13")
        for t in range(4):
            L_.append(f"ds_read_b64_tr_b16 {ar(KSET[st]+t*4,2)}, v{13+t}")
            L_.append(f"ds_read_b64_tr_b16 {ar(KSET[st]+t*4+2,2)}, v{13+t} offset:4096")
        return L_
    def pv_mfma(j, hh, st):
        L_ = []
        for t in range(4):
            lam = 4 * hh + t
            for u in range(3):
                d = 64 + (lam * 3 + u) * 8 + 4
                p = 64 + (j * 3 + u) * 8
                cc = "0" if j == 0 else vr(d)
                L_.append(f"v_mfma_f32_16x16x32_bf16 {vr(d)}, {ar(KSET[st]+t*4)}, {vr(p)}, {cc}")
        return L_
    parked = set(range(2, 2 + NREG))
    def need(n):
        if n in parked: return
        g.wait_vm(f"S{n}")
    def unpark(n):
        if n not in parked: return []
        g.wait_vm(f"R{n}")
        L_ = [f"v_add_u32 v18, s39, v12", f"v_add_u32 v18, {(n % NSLOT)*SLOT}, v18"]
        for ii in range(4):
            L_.append(f"ds_write_b128 v18, {vr(176+(n-2)*16+ii*4)} offset:{ii*1024}")
        return L_

    for r in range(2):
        n0 = 16 * r
        g.c(f"==== round {r} S phase")
        g.stamp()
        g.mark(f"round{r}")
        need(n0)
        e("s_barrier")
        if r == 1: g.mark(f"free_S{n0-1+7}")
        for x in k_reads(n0, 0, 0): e(x)
        e("s_waitcnt lgkmcnt(0)")
        def maxops(j, first):
            L_ = []
            for u in range(3):
                R = 64 + (j * 3 + u) * 8
                if first:
                    L_.append(f"v_max3_f32 v{21+u}, v{R}, v{R+1}, v{R+2}")
                    L_.append(f"v_max3_f32 v{21+u}, v{21+u}, v{R+3}, v{R+4}")
                    L_.append(f"v_max3_f32 v{21+u}, v{21+u}, v{R+5}, v{R+6}")
                    L_.append(f"v_max_f32 v{21+u}, v{21+u}, v{R+7}")
                else:
                    for x in range(0, 8, 2):
                        L_.append(f"v_max3_f32 v{21+u}, v{21+u}, v{R+x}, v{R+x+1}")
            return [L_[u * 4 + c] for c in range(4) for u in range(3)]
        for j in range(8):
            n = n0 + j
            up = unpark(n + 1)
            g.weave(s_mfma(r, j, 0, 0), k_reads(n, 1, 1) + up)
            e("s_waitcnt lgkmcnt(0)")
            mx = maxops(j - 1, j == 1) if j >= 1 else []
            if j < 7:
                need(n + 1)
                e("s_barrier")
                g.mark(f"free_S{n+7}")
                g.weave(s_mfma(r, j, 1, 1), k_reads(n + 1, 0, 0) + mx, frac=1.0)
                e("s_waitcnt lgkmcnt(0)")
            else:
                e("s_barrier")
                g.mark(f"free_S{n+7}")
                g.weave(s_mfma(r, j, 1, 1), mx, frac=1.0)
        g.c("---- softmax: max")
        g.stamp()
        e("s_nop 7"); e("s_nop 1")
        for x in maxops(7, False): e(x)
        for u in range(3): e(f"v_mov_b32 v{40+u}, v{21+u}")
        g.raw("s_nop 1")
        for u in range(3): e(f"v_permlane32_swap_b32 v{21+u}, v{40+u}")
        g.raw("s_nop 1")
        for u in range(3): e(f"v_max_f32 v{21+u}, v{21+u}, v{40+u}")
        for u in range(3): e(f"v_mov_b32 v{40+u}, v{21+u}")
        g.raw("s_nop 1")
        for u in range(3): e(f"v_permlane16_swap_b32 v{21+u}, v{40+u}")
        g.raw("s_nop 1")
        for u in range(3): e(f"v_max_f32 v{21+u}, v{21+u}, v{40+u}")
        e("s_mul_i32 s43, s36, 768")
        e("v_lshlrev_b32 v43, 2, v1")
        e(f"v_add_u32 v43, {E}, v43")
        e("v_add_u32 v44, s43, v43")
        for u in range(3): e(f"ds_write_b32 v44, v{21+u} offset:{u*256}")
        e("s_xor_b32 s43, s36, 2"); e("s_mul_i32 s43, s43, 768")
        e("v_add_u32 v45, s43, v43")
        e("s_waitcnt lgkmcnt(0)")
        e("s_barrier")
        for u in range(3): e(f"ds_read_b32 v{40+u}, v45 offset:{u*256}")
        e("s_waitcnt lgkmcnt(0)")
        for u in range(3): e(f"v_max_f32 v{21+u}, v{21+u}, v{40+u}")
        for u in range(3): e(f"v_mul_f32 v{46+2*u}, s40, v{21+u}")
        g.c("---- softmax: exp")
        g.stamp()
        pend = None
        first_l = [True] * 3
        def lmfma(p, u):
            cc = "0" if first_l[u] else vr(28 + 4 * u)
            first_l[u] = False
            e(f"v_mfma_f32_16x16x32_bf16 {vr(28+4*u)}, {ar(176)}, {vr(p)}, {cc}")
        for j in range(8):
            for u in range(3):
                R = 64 + (j * 3 + u) * 8
                for x in range(0, 8, 2):
                    e(f"v_pk_fma_f32 v[{R+x}:{R+x+1}], v[{R+x}:{R+x+1}], s[40:41], v[{46+2*u}:{47+2*u}] op_sel_hi:[1,0,0] neg_lo:[0,0,1] neg_hi:[0,0,1]")
                if pend is not None: lmfma(*pend)
                for x in range(8): e(f"v_exp_f32 v{R+x}, v{R+x}")
                for x in range(4): e(f"v_cvt_pk_bf16_f32 v{R+x}, v{R+2*x}, v{R+2*x+1}")
                pend = (R, u)
        e("s_nop 1")
        lmfma(*pend)
        e("s_mul_i32 s43, s36, 768")
        e("v_lshlrev_b32 v43, 2, v1")
        e(f"v_add_u32 v43, {E+4096}, v43")
        e("v_add_u32 v44, s43, v43")
        e("s_xor_b32 s43, s36, 2"); e("s_mul_i32 s43, s43, 768")
        e("v_add_u32 v45, s43, v43")
        e("s_nop 7")
        for u in range(3): e(f"ds_write_b32 v44, v{28+4*u} offset:{u*256}")
        e("s_waitcnt lgkmcnt(0)")
        g.c(f"==== round {r} PV phase")
        g.stamp()
        n8 = n0 + 8
        need(n8)
        e("s_barrier")
        for u in range(3): e(f"ds_read_b32 v{40+u}, v45 offset:{u*256}")
        for x in v_reads(n8, 0, 0): e(x)
        e("s_waitcnt lgkmcnt(0)")
        for u in range(3): e(f"v_add_f32 v{40+u}, v{40+u}, v{28+4*u}")
        for u in range(3): e(f"v_rcp_f32 v{24+u}, v{40+u}")
        for j in range(8):
            n = n8 + j
            g.weave(pv_mfma(j, 0, 0), v_reads(n, 1, 1))
            e("s_waitcnt lgkmcnt(0)")
            if j < 7:
                need(n + 1)
                e("s_barrier")
                g.mark(f"free_S{n+7}")
                g.weave(pv_mfma(j, 1, 1), v_reads(n + 1, 0, 0))
                e("s_waitcnt lgkmcnt(0)")
            else:
                for x in pv_mfma(j, 1, 1): e(x)
        g.c("---- O exchange")
        g.stamp()
        e("s_mul_i32 s43, s36, 12288")
        e(f"v_add_u32 v43, {E}, v12")
        e("v_add_u32 v44, s43, v43")
        e("s_xor_b32 s43, s36, 2"); e("s_mul_i32 s43, s43, 12288")
        e("v_add_u32 v45, s43, v43")
        e("s_nop 7")
        for lam in range(4, 8):
            for u in range(3):
                d = 64 + (lam * 3 + u) * 8 + 4
                e(f"ds_write_b128 v44, {vr(d)} offset:{((lam-4)*3+u)*1024}")
        e("s_waitcnt lgkmcnt(0)")
        e("s_barrier")
        for lam in range(4):
            for u in range(3):
                d = 64 + (lam * 3 + u) * 8
                e(f"ds_read_b128 {vr(d)}, v45 offset:{(lam*3+u)*1024}")
        e("s_waitcnt lgkmcnt(0)")
        for lam in range(4):
            for u in range(3):
                d = 64 + (lam * 3 + u) * 8
                for x in range(0, 4, 2):
                    e(f"v_pk_add_f32 v[{d+x}:{d+x+1}], v[{d+x}:{d+x+1}], v[{d+4+x}:{d+4+x+1}]")
        for lam in range(4):
            for u in range(3):
                d = 64 + (lam * 3 + u) * 8
                for x in range(4): e(f"v_mul_f32 v{d+x}, v{d+x}, v{24+u}")
        e("s_lshl_b32 s43, s48, 1"); e(f"s_add_u32 s43, s43, {r}"); e("s_mul_i32 s43, s43, 6")
        e("s_mul_i32 s51, s37, 3"); e("s_add_u32 s43, s43, s51")
        e("s_lshl_b32 s43, s43, 7")
        e("s_lshl_b32 s51, s47, 2"); e("s_add_u32 s43, s43, s51")
        e("s_lshl_b32 s51, s38, 1"); e("s_add_u32 s43, s43, s51")
        e("s_lshl_b32 s43, s43, 10")
        k = 0
        for u in range(3):
            for sg in range(2):
                t0 = 64 + ((2 * sg) * 3 + u) * 8
                t1 = 64 + ((2 * sg + 1) * 3 + u) * 8
                b = 52 + 4 * (k % 3)
                e(f"v_cvt_pk_bf16_f32 v{b}, v{t0}, v{t0+1}")
                e(f"v_cvt_pk_bf16_f32 v{b+1}, v{t0+2}, v{t0+3}")
                e(f"v_cvt_pk_bf16_f32 v{b+2}, v{t1}, v{t1+1}")
                e(f"v_cvt_pk_bf16_f32 v{b+3}, v{t1+2}, v{t1+3}")
                e(f"s_add_u32 s49, s43, {u*131072 + sg*1024}")
                g.vmem(f"buffer_store_dwordx4 {vr(b)}, v12, s[32:35], s49 offen{OPT.get('ost','')}", f"O{r}")
                g.raw("s_nop 1")
                k += 1
    g.mark("end")
    g.raw("L_k1_fin:")
    g.stamp()
    g.wait_vm_all()
    g.stamp()
    g.stamp_out(12, 16*1024*1024)
    g.raw("L_k1_end:")
    g.raw("s_endpgm")
    return g

def make_plan(g1):
    ev = g1.events
    plan = {}
    QD = int(OPT.get("QD", 56))
    for V in ("A", "B"):
        for i in range(3, 10):
            if f"{V}free_Q{i}" not in ev: continue
            p = ev[f"{V}free_Q{i}"]
            for ii in range(10): plan[f"{V}Q{i}.{ii}"] = p + QD * ii
    KD = int(OPT.get("KD", 105))
    for V in ("A", "B"):
        if f"{V}free_Q9" not in ev: continue
        p = ev[f"{V}free_Q9"] + QD * 10
        for k in range(8 + 4 * NREG): plan[f"{V}KIT{k}"] = p + KD * k
    r0, r1, end = ev["round0"], ev["round1"], ev["end"]
    rc = r1 - r0
    delta = rc / 64.0
    first = 2 + NREG
    keys = [(n, ii) for n in range(first, 32) for ii in range(4)]
    def idx(n, ii): return (n * 4 + ii)
    A = min(r0 + idx(n, ii) * delta - ev[f"free_S{n}"] for (n, ii) in keys if f"free_S{n}" in ev)
    A -= float(OPT.get("Aadj", 0))
    for (n, ii) in keys:
        plan[f"S{n}.{ii}"] = r0 + idx(n, ii) * delta - A
    if OPT.get("verbose"):
        for n in range(first, 32):
            print(n, "free", ev.get(f"free_S{n}"), "due", plan[f"S{n}.0"], "need", ev.get(f"need_S{n}"), file=sys.stderr)
        print("delta", delta, "A", A, "rc", rc, file=sys.stderr)
    return plan

def build_k1(name):
    g1 = gen_k1(name, None)
    plan = make_plan(g1)
    g2 = gen_k1(name, plan)
    return ".text\n" + kernel_begin(name) + g2.text()

def gen_k2(name):
    g = G(); e = g.e
    PD = int(OPT.get('PD', 4))
    e("s_cmp_ge_u32 s2, 240")
    e("s_cbranch_scc1 L_k2_end")
    if STAMP: e("s_memrealtime s[100:101]")
    g.stamp()
    e("s_and_b32 s14, s2, 7")
    e("s_lshr_b32 s15, s2, 3")
    e("s_lshr_b32 s46, s14, 2")
    e("s_mul_i32 s3, s46, 40")
    e("s_add_u32 s3, s3, 32")
    e("s_load_dwordx2 s[4:5], s[0:1], s3")
    e("s_load_dwordx2 s[6:7], s[0:1], 80")
    e("s_load_dwordx2 s[12:13], s[0:1], 96")
    e("s_mul_i32 s47, s15, 52"); e("s_lshr_b32 s47, s47, 8")
    e("s_mul_i32 s48, s47, 5"); e("s_sub_u32 s48, s15, s48")
    e("s_and_b32 s49, s14, 1"); e("s_mul_i32 s49, s49, 6"); e("s_add_u32 s47, s47, s49")
    e("s_lshr_b32 s49, s14, 1"); e("s_and_b32 s49, s49, 1"); e("s_mul_i32 s49, s49, 5"); e("s_add_u32 s48, s48, s49")
    e("v_and_b32 v1, 63, v0")
    e("v_lshrrev_b32 v2, 6, v0")
    e("s_nop 0")
    e("v_readfirstlane_b32 s36, v2")
    e("v_and_b32 v2, 15, v1")
    e("v_lshrrev_b32 v3, 4, v1")
    e("s_nop 3")
    e("s_lshl_b32 s43, s36, 15")
    e("v_lshlrev_b32 v4, 4, v1")
    e("v_add_u32 v4, s43, v4")
    for mi in range(1, 4): e(f"v_add_u32 v{4+mi}, {mi*131072}, v4")
    e("s_lshl_b32 s43, s36, 10")
    e("v_lshrrev_b32 v40, 3, v1"); e("v_add_u32 v40, s43, v40"); e("v_mul_u32_u24 v40, 1280, v40")
    e("v_and_b32 v41, 7, v1"); e("v_lshlrev_b32 v42, 1, v3"); e("v_xor_b32 v41, v41, v42"); e("v_lshlrev_b32 v41, 4, v41")
    e("v_add_u32 v8, v40, v41")
    for i in range(1, 4): e(f"v_add_u32 v{8+i}, {8*i*1280 - 1024*i}, v8")
    e("v_lshrrev_b32 v42, 2, v2"); e("v_and_b32 v43, 3, v2")
    e("v_lshlrev_b32 v44, 2, v3"); e("v_add_u32 v44, v44, v42"); e("v_lshlrev_b32 v40, 7, v44")
    e("v_lshrrev_b32 v45, 1, v44"); e("v_and_b32 v45, 3, v45"); e("v_lshlrev_b32 v45, 5, v45")
    e("v_lshlrev_b32 v46, 3, v43")
    e("v_add3_u32 v12, v40, v45, v46")
    e(f"s_mul_i32 s39, s36, {max(PD,4)*4096}")
    e("v_add_u32 v12, s39, v12")
    for t in range(1, 4): e(f"v_xor_b32 v{12+t}, {t<<5}, v12")
    e("s_waitcnt lgkmcnt(0)")
    e("s_mul_i32 s43, s46, 48"); e("s_lshl_b32 s44, s47, 2"); e("s_add_u32 s43, s43, s44"); e("s_lshl_b32 s43, s43, 17")
    e("s_add_u32 s16, s12, s43"); e("s_addc_u32 s17, s13, 0"); e("s_and_b32 s17, s17, 0xffff")
    e("s_mov_b32 s18, 524288"); e("s_mov_b32 s19, 0x20000")
    e("s_lshl_b32 s43, s48, 7")
    e("s_add_u32 s20, s4, s43"); e("s_addc_u32 s21, s5, 0"); e("s_and_b32 s21, s21, 0xffff")
    e("s_sub_u32 s22, 5242880, s43"); e("s_mov_b32 s23, 0x20000")
    e("s_mov_b32 s24, s6"); e("s_and_b32 s25, s7, 0xffff"); e("s_mov_b32 s26, 1966080"); e("s_mov_b32 s27, 0x20000")
    ACC = 64
    OB = 128
    AF = 40
    def loads_wo(s):
        if OPT.get("no_wo"): return
        slot = s % PD
        e(f"s_mov_b32 s43, {s*40960}")
        e(f"s_add_u32 m0, s39, {slot*4096}")
        e("s_nop 0")
        for i in range(4):
            g.vmem(f"buffer_load_dwordx4 v{8+i}, s[20:23], s43 offen offset:{i*1024}{OPT.get('wo_nt','')} lds", f"s{s}")
    def loads_o(s):
        if OPT.get("no_o"): return
        slot = s % PD
        e(f"s_mov_b32 s44, {s*1024}")
        for mi in range(4):
            g.vmem(f"buffer_load_dwordx4 {vr(OB+slot*16+mi*4)}, v{4+mi}, s[16:19], s44 offen{OPT.get('o_nt','')}", f"s{s}")
    def touch(p):
        if OPT.get("touch2", "1") != "1" or p > 3: return
        e(f"s_mov_b32 s43, {p*8192}")
        g.vmem(f"buffer_load_dword v60, v58, s[28:31], s43 offen{OPT.get('to_nt','')}", f"t{p}")
        e(f"s_mov_b32 s43, {p*256*1280}")
        g.vmem(f"buffer_load_dword v61, v59, s[32:35], s43 offen{OPT.get('tw_nt','')}", f"t{p}")
    if OPT.get("touch2", "1") == "1":
        e("s_and_b32 s43, s14, 1"); e("s_mul_i32 s43, s43, 24"); e("s_mul_i32 s44, s46, 48"); e("s_add_u32 s43, s43, s44"); e("s_lshl_b32 s43, s43, 17")
        e("s_add_u32 s28, s12, s43"); e("s_addc_u32 s29, s13, 0"); e("s_and_b32 s29, s29, 0xffff")
        e("s_mov_b32 s30, 3145728"); e("s_mov_b32 s31, 0x20000")
        e("s_lshl_b32 s43, s15, 17"); e("s_lshl_b32 s44, s36, 15"); e("s_add_u32 s43, s43, s44")
        e("v_lshlrev_b32 v58, 7, v1"); e("v_add_u32 v58, s43, v58")
        e("s_lshr_b32 s43, s14, 1"); e("s_and_b32 s43, s43, 1"); e("s_mul_i32 s43, s43, 640")
        e("s_add_u32 s32, s4, s43"); e("s_addc_u32 s33, s5, 0"); e("s_and_b32 s33, s33, 0xffff")
        e("s_sub_u32 s34, 5242880, s43"); e("s_mov_b32 s35, 0x20000")
        e("s_lshl_b32 s43, s15, 6"); e("v_add_u32 v56, s43, v1")
        e("v_mul_u32_u24 v57, 52429, v56"); e("v_lshrrev_b32 v57, 18, v57")
        e("v_mul_u32_u24 v59, 5, v57"); e("v_sub_u32 v59, v56, v59")
        e("v_lshlrev_b32 v59, 7, v59")
        e("s_lshl_b32 s43, s36, 10"); e("v_add_u32 v57, s43, v57"); e("v_mul_u32_u24 v57, 1280, v57")
        e("v_add_u32 v59, v59, v57")
        e("v_mov_b32 v57, 0x7f000000"); e("v_cmp_gt_u32 vcc, 1280, v56"); e("s_nop 1"); e("v_cndmask_b32 v59, v57, v59, vcc")
        touch(0); touch(1)
        if OPT.get('tall'): touch(2); touch(3)
    for s in range(PD):
        loads_wo(s); loads_o(s)
    for s in range(32):
        slot = s % PD
        if s in (0, 1, 8, 16, 24): g.stamp()
        g.wait_vm(f"s{s}")
        if s % 8 == 0 and not OPT.get('tall'): touch(s // 8 + 2)
        for t in range(4):
            e(f"ds_read_b64_tr_b16 {vr(AF+t*4,2)}, v{12+t} offset:{slot*4096}")
            e(f"ds_read_b64_tr_b16 {vr(AF+t*4+2,2)}, v{12+t} offset:{slot*4096+2048}")
        e("s_waitcnt lgkmcnt(0)")
        if s + PD < 32: loads_wo(s + PD)
        for t in range(4):
            for mi in range(4):
                d = ACC + (mi * 4 + t) * 4
                cc = "0" if s == 0 else vr(d)
                e(f"v_mfma_f32_16x16x32_bf16 {vr(d)}, {vr(AF+t*4)}, {vr(OB+slot*16+mi*4)}, {cc}")
        if s + PD < 32: loads_o(s + PD)
    g.stamp()
    e("s_barrier")
    e("v_lshlrev_b32 v40, 4, v1")
    e("s_lshl_b32 s39, s36, 14")
    e("v_add_u32 v41, s39, v40")
    e("s_nop 7")
    for tl in range(16):
        e(f"ds_write_b128 v41, {vr(ACC+tl*4)} offset:{tl*1024}")
    e("s_waitcnt lgkmcnt(0)")
    e("s_barrier")
    e("s_lshl_b32 s43, s36, 12")
    e("v_add_u32 v41, s43, v40")
    for ww in range(4):
        for t in range(4):
            e(f"ds_read_b128 {vr(128+(ww*4+t)*4)}, v41 offset:{ww*16384+t*1024}")
        if ww == 2: e("s_waitcnt lgkmcnt(4)")
    e("s_waitcnt lgkmcnt(0)")
    for t in range(4):
        for ww in range(1, 4):
            for x in range(0, 4, 2):
                d = 128 + t * 4 + x; s_ = 128 + (ww * 4 + t) * 4 + x
                e(f"v_pk_add_f32 v[{d}:{d+1}], v[{d}:{d+1}], v[{s_}:{s_+1}]")
    e("s_lshl_b32 s43, s47, 6"); e("s_lshl_b32 s44, s36, 4"); e("s_add_u32 s43, s43, s44")
    e("v_add_u32 v40, s43, v2"); e("v_mul_u32_u24 v40, 2560, v40")
    e("s_mul_i32 s43, s46, 1280"); e("s_lshl_b32 s44, s48, 7"); e("s_add_u32 s43, s43, s44")
    e("v_lshlrev_b32 v41, 3, v3")
    e("v_add3_u32 v40, v40, v41, s43")
    for t in range(4):
        d = 128 + t * 4
        e(f"v_cvt_pk_bf16_f32 v{44+2*t}, v{d}, v{d+1}")
        e(f"v_cvt_pk_bf16_f32 v{45+2*t}, v{d+2}, v{d+3}")
    for t in range(4):
        e(f"buffer_store_dwordx2 v[{44+2*t}:{45+2*t}], v40, s[24:27], 0 offen offset:{t*32}")
    e("s_waitcnt vmcnt(0)")
    g.stamp()
    g.stamp_out(12, 17*1024*1024)
    e("L_k2_end:")
    e("s_endpgm")
    return ".text\n" + kernel_begin(name) + g.text()

def main(fname):
    src = open("concat_heads__mha_block_cached__mha_block_cached__near_ridge.s.ref").read()
    hdr = [l for l in src.splitlines() if l.startswith(";") and "@launch" not in l and "Override" not in l and "grid=ceil" not in l]
    k1, k2 = "attn_kernel", "oproj_kernel"
    out = "\n".join(hdr) + "\n"
    ll = [f"; @launch kernel={k1} grid=(256,1,1) block=(256,1,1) lds=163840",
                   f"; @launch kernel={k2} grid=(240,1,1) block=(256,1,1) lds={max(int(OPT.get('PD',4)),4)*16384}"]
    if OPT.get("only") == "k2": ll = ll[1:]
    if OPT.get("only") == "k1": ll = ll[:1]
    out += header(ll)
    out += build_k1(k1) + gen_k2(k2)
    out += kernel_desc(k1, vgpr=512, sgpr=102, accum=256)
    out += kernel_desc(k2, vgpr=256, sgpr=102, accum=256)
    open(fname, "w").write(out)

if __name__ == "__main__":
    for a in sys.argv[2:]:
        if a == "stamp": STAMP = True
        else:
            k, v = a.split("=", 1)
            OPT[k] = v.replace("_", " ")
    main(sys.argv[1] if len(sys.argv) > 1 else "v1.s")
```
